```python
import torch

def _softmax(x, axis=-1):
    return torch.softmax(x, dim=axis)
def _gelu(x):
    return torch.nn.functional.gelu(x, approximate="tanh")
def _silu(x):
    return torch.nn.functional.silu(x)
def _sigmoid(x):
    return torch.sigmoid(x)
def _layernorm(x, axis=-1, eps=1e-5):
    m = x.mean(dim=axis, keepdim=True)
    v = x.var(dim=axis, keepdim=True, unbiased=False)
    return (x - m) / torch.sqrt(v + eps)
def _scatter_add(tgt, idx, src, axis=0):
    return tgt.clone().index_add_(axis, idx, src)
def _segment_sum(src, seg, n):
    out = torch.zeros((n,) + src.shape[1:], dtype=src.dtype)
    return out.index_add_(0, seg, src)
def _pad(x, pw):
    flat = tuple(v for pair in reversed(pw) for v in pair)
    return torch.nn.functional.pad(x, flat)

kernel_name = 'standalone__sliding_block_cached__decode'

def setup_inputs():

    _w = (lambda a: (lambda t: t.to(torch.bfloat16) if t.is_floating_point() else t)(torch.as_tensor(a)))
    B, Sq, D = 4, 1, 448
    Hq, Hkv, Sk, Dh = 16, 8, 4096, 256
    assert Hq % Hkv == 0, (Hq, Hkv)
    return {
        "x": _w((lambda *s: torch.randn(*s, dtype=torch.bfloat16) * 0.8)(B, Sq, D)),
        "k_cache": _w((lambda *s: torch.randn(*s, dtype=torch.bfloat16) * 0.8)(B, Hkv, Sk, Dh)),
        "v_cache": _w((lambda *s: torch.randn(*s, dtype=torch.bfloat16) * 0.05)(B, Hkv, Sk, Dh)),
        "wq": _w((lambda *s: torch.randn(*s, dtype=torch.bfloat16) * 0.8)(D, Hq * Dh) * (D ** -0.5)),
        "wo": _w((lambda *s: torch.randn(*s, dtype=torch.bfloat16) * 0.05)(Hq * Dh, D) * ((Hq * Dh) ** -0.5)),
    }

def reference(x, k_cache, v_cache, wq, wo):
    B, Sq, D = x.shape
    Hq, Dh = 16, 256
    Hkv, Sk = k_cache.shape[1], k_cache.shape[2]
    W = min(4096, max(256, Sk // 4))
    rep = Hq // Hkv
    q = (lambda x, *d: x.permute(*d))((x @ wq).reshape(B, Sq, Hq, Dh), 0, 2, 1, 3)
    k = (lambda x, n, axis: torch.repeat_interleave(x, n, dim=axis))(k_cache[:, :, Sk - W:, :], rep, axis=1)
    v = (lambda x, n, axis: torch.repeat_interleave(x, n, dim=axis))(v_cache[:, :, Sk - W:, :], rep, axis=1)
    scores = torch.einsum("bhqd,bhkd->bhqk", q, k) * (Dh ** -0.5)
    p = _softmax(scores, axis=-1)
    o = torch.einsum("bhqk,bhkd->bhqd", p, v)
    return (lambda x, *d: x.permute(*d))(o, 0, 2, 1, 3).reshape(B, Sq, Hq * Dh) @ wo
```

```python
KNAME = "standalone__sliding_block_cached__decode_kernel"

HEADER = """; Kernarg layout for this problem (64 bytes, ptrs only, base s[0:1]):
"""

class Asm:
    def __init__(self):
        self.lines = []
    def __call__(self, s=""):
        for l in s.split("\n"):
            self.lines.append(l if (l.strip().endswith(":") or not l.strip()) else "    " + l.strip())
    def raw(self, s):
        self.lines.append(s)
    def text(self):
        return "\n".join(self.lines) + "\n"

def kernel_begin(a, name=KNAME):
    a.raw(".text")
    a.raw(".globl %s" % name)
    a.raw(".p2align 8")
    a.raw(".type %s,@function" % name)
    a.raw("%s:" % name)

def kernel_desc(a, name=KNAME, vgpr=256, sgpr=102, accum=256):
    a.raw('.section .rodata,"a"')
    a.raw(".p2align 6")
    a.raw(".amdhsa_kernel %s" % name)
    a.raw("  .amdhsa_next_free_vgpr %d" % vgpr)
    a.raw("  .amdhsa_next_free_sgpr %d" % sgpr)
    a.raw("  .amdhsa_accum_offset %d" % accum)
    a.raw("  .amdhsa_group_segment_fixed_size 0")
    a.raw("  .amdhsa_kernarg_size 64")
    a.raw("  .amdhsa_user_sgpr_count 2")
    a.raw("  .amdhsa_user_sgpr_kernarg_segment_ptr 1")
    a.raw("  .amdhsa_system_sgpr_workgroup_id_x 1")
    a.raw("  .amdhsa_float_denorm_mode_32 3")
    a.raw(".end_amdhsa_kernel")

def file_head(grid, block, lds, stamps=None):
    s = HEADER
    s += "; @launch grid=(%d,1,1) block=(%d,1,1) lds=%d\n" % (grid, block, lds)
    if stamps:
        s += "; stamps: " + " ".join(stamps) + "\n"
    s += '.amdgcn_target "amdgcn-amd-amdhsa--gfx950"\n'
    return s

def stamp(a, i, on=True):
    if not on:
        return
    a("s_memrealtime s[78:79]")
    a("s_waitcnt lgkmcnt(0)")
    a("s_mov_b32 s%d, s78" % (80 + i))

def stamps_init(a, n, on=True):
    if not on:
        return
    for i in range(n):
        a("s_mov_b32 s%d, 0" % (80 + i))

def stamps_flush(a, n, ws_pair, wg_sgpr, wave_sgpr, vt0, vt1, on=True):
    if not on:
        return
    a("s_mov_b64 exec, -1")
    a("v_mov_b32 v%d, 0" % vt0)
    for i in range(n):
        a("v_writelane_b32 v%d, s%d, %d" % (vt0, 80 + i, i))
    a("s_lshl_b32 s76, s%d, 4" % wg_sgpr)
    a("s_add_u32 s76, s76, s%d" % wave_sgpr)
    a("s_lshl_b32 s76, s76, 6")
    a("s_add_u32 s76, s76, 0x8000000")
    a("v_mbcnt_lo_u32_b32 v%d, -1, 0" % vt1)
    a("v_mbcnt_hi_u32_b32 v%d, -1, v%d" % (vt1, vt1))
    a("v_lshlrev_b32 v%d, 2, v%d" % (vt1, vt1))
    a("v_add_u32 v%d, s76, v%d" % (vt1, vt1))
    a("s_mov_b64 exec, 0xffff")
    a("global_store_dword v%d, v%d, s[%d:%d]" % (vt1, vt0, ws_pair, ws_pair + 1))
    a("s_waitcnt vmcnt(0)")
```

```python
import sys
sys.path.insert(0, "exp")
from asmlib import *

WS_EPOCH = 0
WS_Q = 0x1000
WS_S = 0x20000
WS_O = 0x60000
L_V = 0
L_WO = 65536
L_WQ = L_WO + 57344
L_X = L_WQ + 14336
L_Q = L_X + 4096
L_O = L_Q + 1024
L_ST = L_O + 1024
L_FLAG = L_ST + 64
LDS_BYTES = L_FLAG + 64
SPIN = 1 << 20
C_SCALE = 0x3DB8AA3B

STN = ["start", "C.wq", "C.qpub", "C.BX", "C.qgot", "W.K", "W.q", "W.spub", "W.sgot", "W.BV", "W.BC", "W.opub", "L.done", "C.BC", "C.got", "end"]

def gen(st=False, N=12, XK=6, ntk="nt", ntv="nt", ntq="nt", nto="nt", prefetch=True, vkey="none", spin=SPIN):
    a = Asm()
    S = lambda i: stamp(a, i, st)
    pol = lambda p: (" " + p) if p else ""
    kernel_begin(a)
    a("s_load_dwordx16 s[4:19], s[0:1], 0")
    a("s_cmp_ge_u32 s2, 256")
    a("s_cbranch_scc1 L_end")
    a("v_lshrrev_b32 v1, 6, v0")
    a("v_and_b32 v0, 63, v0                 ; lane")
    a("s_and_b32 s20, s2, 7                 ; kvh")
    a("v_readfirstlane_b32 s21, v1          ; wave")
    a("s_lshr_b32 s22, s2, 3                ; r = 8b + j")
    a("s_lshr_b32 s23, s2, 6                ; b")
    a("s_and_b32 s24, s22, 7                ; j")
    if st:
        stamps_init(a, 16)
        S(0)
    a("s_lshl_b32 s25, s23, 3")
    a("s_add_u32 s25, s25, s20")
    a("s_cmp_ge_u32 s21, 3")
    a("s_cbranch_scc1 L_work")
    a("s_cmp_ge_u32 s21, 1")
    a("s_cbranch_scc1 L_load")
    if prefetch:
        a("s_getpc_b64 s[26:27]")
        a("v_lshlrev_b32 v2, 7, v0")
        a("v_min_u32 v2, L_end - L_pc0, v2")
        a.raw("L_pc0:")
        a("global_load_dword v3, v2, s[26:27]")
    a("v_lshrrev_b32 v4, 1, v0")
    a("v_and_b32 v5, 3, v4")
    a("v_bfe_u32 v6, v0, 3, 2")
    a("v_lshl_add_u32 v5, v6, 3, v5")
    a("v_lshrrev_b32 v6, 5, v0")
    a("v_lshl_add_u32 v5, v6, 2, v5")
    a("v_lshlrev_b32 v5, 13, v5")
    a("v_and_b32 v6, 1, v0")
    a("v_lshl_add_u32 v5, v6, 4, v5")
    a("s_lshl_b32 s28, s20, 10")
    a("s_lshl_b32 s29, s22, 5")
    a("s_add_u32 s28, s28, s29")
    a("v_add_u32 v5, s28, v5")
    a("v_lshlrev_b32 v6, 4, v0")
    a("s_mov_b32 m0, %d" % L_WQ)
    a("s_waitcnt lgkmcnt(0)")
    a("s_load_dword s30, s[18:19], %d" % WS_EPOCH)
    for i in range(14):
        a("global_load_lds_dwordx4 v5, s[10:11]" + pol(ntq))
        a("s_add_u32 m0, m0, 1024")
        if i < 13:
            a("v_add_u32 v5, 0x40000, v5")
        else:
            a("s_nop 0")
    for i in range(3):
        a("global_load_lds_dwordx4 v6, s[4:5] offset:%d" % (1024 * i))
    a("s_mov_b32 exec_hi, 0")
    a("global_load_lds_dwordx4 v6, s[4:5] offset:3072")
    a("s_mov_b64 exec, -1")
    a("s_barrier")
    a("v_mov_b32 v7, %d" % L_FLAG)
    a("v_mov_b32 v8, 0")
    a("ds_write_b32 v7, v8")
    a("v_lshlrev_b32 v9, 3, v0")
    a("v_add_u32 v10, %d, v9" % L_WQ)
    a("v_and_b32 v11, 3, v0")
    a("v_mul_u32_u24 v11, 896, v11")
    a("v_lshrrev_b32 v12, 4, v0             ; g")
    a("v_lshl_add_u32 v11, v12, 4, v11")
    a("v_add_u32 v11, %d, v11" % L_X)
    a("v_and_b32 v13, 15, v0")
    a("v_lshlrev_b32 v13, 11, v13")
    a("v_lshl_add_u32 v13, v12, 4, v13")
    a("s_lshl_b32 s28, s20, 13")
    a("s_lshl_b32 s29, s22, 6")
    a("s_add_u32 s29, s29, s28")
    a("s_add_u32 s29, s29, %d" % WS_Q)
    a("v_add_u32 v13, s29, v13")
    a("s_lshl_b32 s29, s23, 11")
    a("s_add_u32 s29, s29, s28")
    a("s_add_u32 s29, s29, %d" % WS_Q)
    a("v_add_u32 v14, s29, v6")
    a("v_add_u32 v15, %d, v9" % L_Q)
    a("s_waitcnt vmcnt(0) lgkmcnt(0)")
    S(1)
    a("s_add_u32 s30, s30, 1")
    a("v_mov_b32 v22, s30")
    a("v_mov_b32 v23, s30")
    def qread(s):
        r = 32 + 8 * s
        a("ds_read_b64_tr_b16 v[%d:%d], v10 offset:%d" % (r, r + 1, 1024 * s))
        a("ds_read_b64_tr_b16 v[%d:%d], v10 offset:%d" % (r + 2, r + 3, 1024 * s + 512))
        a("ds_read_b128 v[%d:%d], v11 offset:%d" % (r + 4, r + 7, 64 * s))
    AH = 4
    for s in range(AH):
        qread(s)
    for s in range(14):
        if s + AH < 14:
            qread(s + AH)
        a("s_waitcnt lgkmcnt(%d)" % (3 * min(AH, 13 - s)))
        r = 32 + 8 * s
        a("v_mfma_f32_16x16x32_bf16 v[16:19], v[%d:%d], v[%d:%d], %s" % (r, r + 3, r + 4, r + 7, "0" if s == 0 else "v[16:19]"))
    a("s_and_b32 s31, s30, 0x1fff")
    a("s_or_b32 s31, s31, 0x2000")
    a("s_and_b32 s32, s30, 0xff")
    a("s_mov_b32 exec_lo, 0x000f000f")
    a("s_mov_b32 exec_hi, 0x000f000f")
    a("s_nop 3")
    a("v_cvt_pk_bf16_f32 v20, v16, v17")
    a("v_cvt_pk_bf16_f32 v21, v18, v19")
    a("global_store_dwordx4 v13, v[20:23], s[18:19] sc1")
    a("s_mov_b64 exec, -1")
    S(2)
    a("v_mov_b32 v8, s31")
    a("s_mov_b32 s33, %d" % spin)
    a("s_barrier                            ; BX")
    S(3)
    a.raw("L_qpoll:")
    a("global_load_dwordx4 v[24:27], v14, s[18:19] sc1")
    a("global_load_dwordx4 v[28:31], v14, s[18:19] offset:1024 sc1")
    a("s_sub_u32 s33, s33, 1")
    a("s_cbranch_scc1 L_qgot")
    a("s_waitcnt vmcnt(0)")
    for r in (26, 27, 30, 31):
        a("v_cmpx_eq_u32 vcc, s30, v%d" % r)
    a("s_cmp_eq_u64 exec, -1")
    a("s_mov_b64 exec, -1")
    a("s_cbranch_scc0 L_qpoll")
    a.raw("L_qgot:")
    a("ds_write_b64 v15, v[24:25]")
    a("ds_write_b64 v15, v[28:29] offset:512")
    a("ds_write_b32 v7, v8")
    S(4)
    a("s_lshl_b32 s34, s20, 3")
    a("s_add_u32 s34, s34, s24              ; m")
    a("s_mul_i32 s28, s23, %d" % (64 * 1792))
    a("s_lshl_b32 s29, s34, 5")
    a("s_add_u32 s28, s28, s29")
    a("s_add_u32 s28, s28, %d" % WS_O)
    a("v_mul_u32_u24 v14, 1792, v0")
    a("v_add_u32 v14, s28, v14")
    a("s_mul_i32 s28, s23, 896")
    a("s_lshl_b32 s29, s20, 7")
    a("s_add_u32 s28, s28, s29")
    a("s_lshl_b32 s29, s24, 2")
    a("s_add_u32 s28, s28, s29")
    a("v_lshlrev_b32 v13, 5, v12")
    a("v_add_u32 v13, s28, v13")
    a("v_mov_b32 v9, s32")
    a("s_mov_b32 s33, %d" % spin)
    a("s_waitcnt lgkmcnt(0)")
    a("s_barrier                            ; BV")
    a("s_barrier                            ; BC")
    S(13)
    a("s_cmp_ge_u32 s34, 56")
    a("s_cbranch_scc1 L_fin")
    a.raw("L_opoll:")
    a("global_load_dwordx4 v[24:27], v14, s[18:19] sc1")
    a("global_load_dwordx4 v[28:31], v14, s[18:19] offset:16 sc1")
    a("s_sub_u32 s33, s33, 1")
    a("s_cbranch_scc1 L_ogot")
    a("s_waitcnt vmcnt(0)")
    for r in range(24, 32):
        a("v_cmpx_eq_u32_sdwa vcc, v%d, v9 src0_sel:BYTE_0 src1_sel:DWORD" % r)
    a("s_cmp_eq_u64 exec, -1")
    a("s_mov_b64 exec, -1")
    a("s_cbranch_scc0 L_opoll")
    a.raw("L_ogot:")
    S(14)
    a("s_nop 1")
    a("v_permlane32_swap_b32 v24, v26")
    a("v_permlane32_swap_b32 v25, v27")
    a("v_permlane32_swap_b32 v28, v30")
    a("v_permlane32_swap_b32 v29, v31")
    a("v_add_f32 v24, v24, v26")
    a("v_add_f32 v25, v25, v27")
    a("v_add_f32 v28, v28, v30")
    a("v_add_f32 v29, v29, v31")
    a("s_nop 0")
    a("v_permlane16_swap_b32 v24, v25")
    a("v_permlane16_swap_b32 v28, v29")
    a("v_add_f32 v24, v24, v25")
    a("v_add_f32 v28, v28, v29")
    for k in (8, 4, 2, 1):
        a("s_nop 0")
        a("v_add_f32_dpp v24, v24, v24 row_ror:%d row_mask:0xf bank_mask:0xf" % k)
        a("v_add_f32_dpp v28, v28, v28 row_ror:%d row_mask:0xf bank_mask:0xf" % k)
    a("s_mov_b32 exec_lo, 0x00010001")
    a("s_mov_b32 exec_hi, 0x00010001")
    a("v_cvt_pk_bf16_f32 v24, v24, v28")
    a("global_store_dword v13, v24, s[14:15]")
    a("s_cmp_lg_u32 s2, 0")
    a("s_cbranch_scc1 L_fin")
    a("s_mov_b64 exec, 1")
    a("v_mov_b32 v13, %d" % WS_EPOCH)
    a("global_store_dword v13, v22, s[18:19]")
    a("s_branch L_fin")
    a.raw("L_load:")
    a("s_sub_u32 s26, s21, 1")
    a("v_lshrrev_b32 v1, 3, v0              ; r8")
    a("v_mul_u32_u24 v2, 896, v1")
    a("v_and_b32 v1, 6, v1")
    a("v_xor_b32 v1, v1, v0")
    a("v_and_b32 v1, 7, v1")
    a("v_lshl_add_u32 v2, v1, 4, v2")
    a("v_lshrrev_b32 v1, 2, v0")
    a("v_lshlrev_b32 v3, 9, v1")
    a("v_lshrrev_b32 v1, 3, v0")
    a("v_and_b32 v1, 2, v1")
    a("v_xor_b32 v1, v1, v0")
    a("v_and_b32 v1, 3, v1")
    a("v_lshl_add_u32 v3, v1, 4, v3")
    a("s_lshl_b32 s27, s20, 1")
    a("s_add_u32 s27, s27, s26")
    a("s_lshl_b32 s27, s27, 3")
    a("s_add_u32 s27, s27, s24")
    a("s_mul_i32 s27, s27, %d               ; first wo row * 896" % (32 * 896))
    a("s_lshl_b32 s28, s25, 21")
    a("s_lshl_b32 s29, s24, 6")
    a("s_add_u32 s28, s28, s29")
    a("s_add_u32 s28, s28, %d" % (3072 * 512))
    a("s_mul_i32 s29, s26, 28672")
    a("s_add_u32 s29, s29, %d" % L_WO)
    a("s_waitcnt lgkmcnt(0)")
    a("s_add_u32 s36, s12, s27")
    a("s_addc_u32 s37, s13, 0")
    a("s_mov_b32 s38, 28672")
    a("s_mov_b32 s39, 0x20000")
    a("s_add_u32 s40, s8, s28")
    a("s_addc_u32 s41, s9, 0")
    a("s_mov_b32 s42, %d" % (1024 * 512 - 448))
    a("s_mov_b32 s43, 0x20000")
    if vkey == "none":
        a("s_mov_b32 s44, s26")
    elif vkey == "kb":
        a("s_lshl_b32 s44, s25, 1")
        a("s_or_b32 s44, s44, s26")
    elif vkey == "jb":
        a("s_lshr_b32 s44, s22, 1")
        a("s_lshl_b32 s44, s44, 1")
        a("s_or_b32 s44, s44, s26")
    a("s_barrier                            ; B0")
    a("s_mov_b32 m0, s29")
    a("s_mov_b32 s30, 0")
    a("s_barrier                            ; BX")
    a.raw("L_wo:")
    for rb in range(4):
        a("s_add_u32 s31, s30, %d" % (7168 * rb))
        a("s_waitcnt vmcnt(%d)" % (N - 1))
        a("buffer_load_dwordx4 v2, s[36:39], s31 offen%s lds" % pol(nto))
        a("s_add_u32 m0, m0, 1024")
    a("s_add_u32 s30, s30, 128")
    a("s_cmp_lt_u32 s30, 896")
    a("s_cbranch_scc1 L_wo")
    a("s_mov_b32 s30, 0")
    a.raw("L_v:")
    a("s_xor_b32 s31, s30, s44")
    a("s_lshl_b32 m0, s31, 10")
    a("s_lshl_b32 s31, s31, 13")
    a("s_add_u32 s30, s30, 2")
    a("s_cmp_lt_u32 s30, 64")
    a("s_waitcnt vmcnt(%d)" % (N - 1))
    a("buffer_load_dwordx4 v3, s[40:43], s31 offen%s lds" % pol(ntv))
    a("s_cbranch_scc1 L_v")
    a("s_waitcnt vmcnt(0)")
    S(12)
    a("s_barrier                            ; BV")
    a("s_branch L_fin")
    a.raw("L_work:")
    a("s_sub_u32 s26, s21, 3                ; w")
    a("v_and_b32 v3, 3, v0                  ; lane&3")
    a("v_bfe_u32 v4, v0, 2, 2               ; (lane>>2)&3")
    a("v_lshrrev_b32 v5, 4, v0              ; g")
    a("v_lshlrev_b32 v1, 4, v3")
    a("v_lshl_add_u32 v1, v4, 11, v1")
    a("v_lshl_add_u32 v1, v5, 6, v1")
    a("v_add_u32 v2, 8192, v1")
    a("s_lshl_b32 s27, s24, 2")
    a("s_add_u32 s27, s27, s26")
    a("s_lshl_b32 s28, s25, 21")
    a("s_lshl_b32 s29, s27, 14")
    a("s_add_u32 s28, s28, s29")
    a("s_add_u32 s28, s28, %d" % (3072 * 512))
    a("s_waitcnt lgkmcnt(0)")
    a("s_add_u32 s30, s6, s28")
    a("s_addc_u32 s31, s7, 0")
    a("s_barrier                            ; B0")
    for be in range(2):
        for r in range(4):
            for t in range(2):
                d = 64 + 4 * (8 * be + 2 * r + t)
                a("global_load_dwordx4 v[%d:%d], v%d, s[30:31] offset:%d%s" % (d, d + 3, 1 + be, 512 * r + 256 * t, pol(ntk)))
    a("v_and_b32 v6, 1, v0                  ; h")
    a("v_lshlrev_b32 v7, 9, v6")
    a("v_lshl_add_u32 v7, v5, 6, v7")
    a("v_lshl_add_u32 v7, v4, 4, v7")
    a("v_add_u32 v7, %d, v7" % L_Q)
    a("v_mov_b32 v8, %d" % L_FLAG)
    a("v_lshl_add_u32 v9, v5, 1, v6")
    a("v_lshlrev_b32 v9, 5, v9")
    a("s_lshl_b32 s28, s25, 13")
    a("s_add_u32 s28, s28, %d" % WS_S)
    a("s_lshl_b32 s29, s27, 8")
    a("s_add_u32 s29, s29, s28")
    a("v_lshl_add_u32 v10, v4, 4, v9")
    a("v_add_u32 v10, s29, v10")
    a("s_lshl_b32 s29, s26, 11")
    a("s_add_u32 s29, s29, s28")
    a("v_bfe_u32 v11, v0, 1, 3")
    a("v_lshl_add_u32 v11, v11, 8, v9")
    a("v_add_u32 v11, s29, v11")
    a("v_lshrrev_b32 v12, 2, v0")
    a("v_lshlrev_b32 v12, 6, v12")
    a("v_lshl_add_u32 v12, v3, 3, v12")
    a("v_and_b32 v13, 1, v5")
    a("v_lshl_add_u32 v12, v13, 5, v12")
    a("s_lshl_b32 s29, s26, 14")
    a("v_add_u32 v12, s29, v12")
    a("v_xor_b32 v13, 32, v12")
    a("v_lshrrev_b32 v14, 2, v0")
    a("v_lshlrev_b32 v14, 7, v14")
    a("v_lshl_add_u32 v14, v3, 3, v14")
    a("v_bfe_u32 v15, v0, 3, 2")
    a("v_lshl_add_u32 v14, v15, 5, v14")
    a("s_lshl_b32 s29, s26, 13")
    a("s_add_u32 s29, s29, %d" % L_WO)
    a("v_add_u32 v224, s29, v14")
    a("v_xor_b32 v225, 32, v224")
    a("v_xor_b32 v226, 64, v224")
    a("v_xor_b32 v227, 96, v224")
    a("s_lshl_b32 s29, s26, 3")
    a("s_add_u32 s29, s29, %d" % L_ST)
    a("v_lshlrev_b32 v228, 5, v6")
    a("v_add_u32 v228, s29, v228")
    a("v_bfe_u32 v229, v0, 3, 1")
    a("v_lshl_add_u32 v229, v229, 2, v3")
    a("v_lshlrev_b32 v229, 3, v229")
    a("v_add_u32 v229, %d, v229" % L_ST)
    a("s_lshl_b32 s29, s26, 4")
    a("s_add_u32 s29, s29, %d" % L_O)
    a("v_lshlrev_b32 v230, 8, v5")
    a("v_lshl_add_u32 v230, v6, 7, v230")
    a("v_add_u32 v230, s29, v230")
    a("v_lshlrev_b32 v232, 4, v0")
    a("v_add_u32 v231, %d, v232" % L_O)
    a("s_lshl_b32 s28, s25, 3")
    a("s_add_u32 s28, s28, s24")
    a("s_mul_i32 s28, s28, 1792")
    a("s_lshl_b32 s29, s26, 9")
    a("s_add_u32 s28, s28, s29")
    a("s_add_u32 s28, s28, %d" % WS_O)
    a("v_add_u32 v232, s28, v232")
    for i in range(4):
        a("v_mov_b32 v%d, 0x3f803f80" % (236 + i))
    a("s_mov_b32 s33, %d" % spin)
    a("s_mov_b32 s35, 0x%x" % C_SCALE)
    a("s_waitcnt vmcnt(%d)" % XK)
    a("s_barrier                            ; BX")
    a("s_waitcnt vmcnt(0)")
    S(5)
    a.raw("L_qspin:")
    a("ds_read_b32 v24, v8")
    a("ds_read_b128 v[16:19], v7")
    a("ds_read_b128 v[20:23], v7 offset:256")
    a("s_sub_u32 s33, s33, 1")
    a("s_cbranch_scc1 L_qseen")
    a("s_waitcnt lgkmcnt(0)")
    a("v_readfirstlane_b32 s32, v24")
    a("s_cmp_eq_u32 s32, 0")
    a("s_cbranch_scc1 L_qspin")
    a.raw("L_qseen:")
    S(6)
    for T in range(8):
        d = 32 + 4 * T; k = 64 + 8 * T
        a("v_mfma_f32_16x16x32_bf16 v[%d:%d], v[%d:%d], v[16:19], 0" % (d, d + 3, k, k + 3))
        a("v_mfma_f32_16x16x32_bf16 v[%d:%d], v[%d:%d], v[20:23], v[%d:%d]" % (d, d + 3, k + 4, k + 7, d, d + 3))
    a("s_lshl_b32 s34, s32, 16")
    for be in range(2):
        for step in range(3):
            for r in range(4):
                d = 32 + 4 * (4 * be + r)
                src1 = d + be if step == 0 else 24 + r
                a("v_add_f32_dpp v%d, v%d, v%d row_ror:%d row_mask:0xf bank_mask:0x%x" % (24 + r, d + ((be + step + 1) & 3), src1, 12 - 4 * step, 1 << be))
    a("s_mov_b32 exec_lo, 0x00330033")
    a("s_mov_b32 exec_hi, 0x00330033")
    for r in range(4):
        a("v_cvt_pk_bf16_f32 v%d, s34, v%d" % (28 + r, 24 + r))
    a("global_store_dwordx4 v10, v[28:31], s[18:19] sc1")
    a("s_mov_b64 exec, -1")
    S(7)
    a("s_mov_b32 s33, %d" % spin)
    a.raw("L_spoll:")
    a("global_load_dwordx4 v[32:35], v11, s[18:19] sc1")
    a("global_load_dwordx4 v[36:39], v11, s[18:19] offset:16 sc1")
    a("s_sub_u32 s33, s33, 1")
    a("s_cbranch_scc1 L_sgot")
    a("s_waitcnt vmcnt(0)")
    for r in range(32, 40):
        a("v_cmpx_eq_u16 vcc, s32, v%d" % r)
    a("s_cmp_eq_u64 exec, -1")
    a("s_mov_b64 exec, -1")
    a("s_cbranch_scc0 L_spoll")
    a.raw("L_sgot:")
    S(8)
    for r in range(32, 40):
        a("v_and_b32 v%d, 0xffff0000, v%d" % (r, r))
    a("v_max3_f32 v24, v32, v33, v34")
    a("v_max3_f32 v25, v35, v36, v37")
    a("v_max3_f32 v24, v38, v39, v24")
    a("v_max_f32 v24, v24, v25")
    for k in (2, 4, 8):
        a("s_nop 1")
        a("v_max_f32_dpp v24, v24, v24 row_ror:%d row_mask:0xf bank_mask:0xf" % k)
    a("v_mov_b32 v25, v24")
    a("s_nop 1")
    a("v_permlane16_swap_b32 v24, v25")
    a("v_max_f32 v24, v24, v25")
    a("v_mov_b32 v25, v24")
    a("s_nop 1")
    a("v_permlane32_swap_b32 v24, v25")
    a("v_max_f32 v24, v24, v25")
    a("v_mul_f32 v24, s35, v24")
    for r in range(32, 40):
        a("v_fma_f32 v%d, v%d, s35, -v24" % (r, r))
    for r in range(32, 40):
        a("v_exp_f32 v%d, v%d" % (r, r))
    for i in range(4):
        a("v_cvt_pk_bf16_f32 v%d, v%d, v%d" % (64 + i, 32 + 2 * i, 33 + 2 * i))
    a("s_nop 1")
    a("v_mfma_f32_16x16x32_bf16 v[48:51], v[236:239], v[64:67], 0")
    for u in range(1, 8):
        for i in range(4):
            a("v_mov_b32_dpp v%d, v%d row_shl:%d row_mask:0xf bank_mask:0xf" % (64 + 4 * u + i, 64 + i, 2 * u))
    a("v_add_f32_dpp v25, v48, v48 row_ror:2 row_mask:0xf bank_mask:0xf")
    for k in (4, 8):
        a("s_nop 1")
        a("v_add_f32_dpp v25, v25, v25 row_ror:%d row_mask:0xf bank_mask:0xf" % k)
    a("s_mov_b64 exec, 3")
    a("ds_write_b64 v228, v[24:25]")
    a("s_mov_b64 exec, -1")
    a("s_waitcnt lgkmcnt(0)")
    a("s_barrier                            ; BV")
    S(9)
    reads = ["ds_read_b64 v[26:27], v229"]
    for u in range(8):
        for ct in range(2):
            d = 96 + 8 * u + 4 * ct
            reads.append("ds_read_b64_tr_b16 v[%d:%d], v%d offset:%d" % (d, d + 1, 12 + ct, 2048 * u))
            reads.append("ds_read_b64_tr_b16 v[%d:%d], v%d offset:%d" % (d + 2, d + 3, 12 + ct, 2048 * u + 1024))
    for c in range(2):
        for tt in range(4):
            for h in range(2):
                d = 160 + 4 * (8 * c + 2 * tt + h)
                reads.append("ds_read_b64_tr_b16 v[%d:%d], v%d offset:%d" % (d, d + 1, 224 + tt, 28672 * h + 4096 * c))
                reads.append("ds_read_b64_tr_b16 v[%d:%d], v%d offset:%d" % (d + 2, d + 3, 224 + tt, 28672 * h + 4096 * c + 2048))
    scale_ops = [
        "v_max_f32_dpp v28, v26, v26 quad_perm:[1,0,3,2] row_mask:0xf bank_mask:0xf",
        "v_max_f32_dpp v28, v28, v28 quad_perm:[2,3,0,1] row_mask:0xf bank_mask:0xf",
        "v_sub_f32 v28, v26, v28",
        "v_exp_f32 v28, v28",
        "v_mul_f32 v29, v28, v27",
        "v_add_f32_dpp v29, v29, v29 quad_perm:[1,0,3,2] row_mask:0xf bank_mask:0xf",
        "v_add_f32_dpp v29, v29, v29 quad_perm:[2,3,0,1] row_mask:0xf bank_mask:0xf",
        "v_rcp_f32 v29, v29",
        "v_mul_f32 v28, v28, v29",
    ]
    issued = 0
    WIN = 13
    while issued < WIN:
        a(reads[issued]); issued += 1
    for u in range(8):
        for ct in range(2):
            need = 1 + 4 * u + 2 * ct + 2
            a("s_waitcnt lgkmcnt(%d)" % (issued - need))
            d = 96 + 8 * u + 4 * ct
            acc = 52 + 4 * ct
            a("v_mfma_f32_16x16x32_bf16 v[%d:%d], v[%d:%d], v[%d:%d], %s" % (acc, acc + 3, d, d + 3, 64 + 4 * u, 67 + 4 * u, "0" if u == 0 else "v[%d:%d]" % (acc, acc + 3)))
            for _ in range(2):
                a(reads[issued]); issued += 1
            if scale_ops:
                a(scale_ops.pop(0))
    assert not scale_ops
    for _ in range(8):
        a(reads[issued]); issued += 1
    a("s_mov_b32 exec_lo, 0x00030003")
    a("s_mov_b32 exec_hi, 0x00030003")
    a("ds_write_b128 v230, v[52:55]")
    a("ds_write_b128 v230, v[56:59] offset:64")
    a("s_mov_b64 exec, -1")
    a("s_waitcnt lgkmcnt(0)")
    a("s_barrier                            ; BC")
    a("ds_read_b128 v[32:35], v231")
    rest = len(reads) - issued
    while issued < len(reads):
        a(reads[issued]); issued += 1
    a("s_waitcnt lgkmcnt(%d)" % rest)
    S(10)
    for i in range(4):
        a("v_mul_f32 v%d, v%d, v28" % (32 + i, 32 + i))
    for qp in ("[1,0,3,2]", "[2,3,0,1]"):
        for i in range(4):
            a("v_add_f32_dpp v%d, v%d, v%d quad_perm:%s row_mask:0xf bank_mask:0xf" % (32 + i, 32 + i, 32 + i, qp))
    a("v_cvt_pk_bf16_f32 v36, v32, v33")
    a("v_cvt_pk_bf16_f32 v37, v34, v35")
    a("s_mov_b32 s36, 0xff")
    a("v_mov_b32 v24, s32")
    for k in range(1, 4):
        a("v_mov_b32_dpp v%d, v36 row_ror:%d row_mask:0xf bank_mask:0xf" % (36 + 2 * k, 16 - 4 * k))
        a("v_mov_b32_dpp v%d, v37 row_ror:%d row_mask:0xf bank_mask:0xf" % (37 + 2 * k, 16 - 4 * k))
    a("s_waitcnt lgkmcnt(0)")
    a("s_nop 0")
    for c in range(2):
        for tt in range(4):
            acc = 64 + 4 * (4 * c + tt)
            d = 160 + 4 * (8 * c + 2 * tt)
            a("v_mfma_f32_16x16x32_bf16 v[%d:%d], v[36:39], v[%d:%d], 0" % (acc, acc + 3, d, d + 3))
            a("v_mfma_f32_16x16x32_bf16 v[%d:%d], v[40:43], v[%d:%d], v[%d:%d]" % (acc, acc + 3, d + 4, d + 7, acc, acc + 3))
    a("s_mov_b64 exec, 0xffff")
    for tt in range(4):
        a("v_bfi_b32 v%d, s36, v24, v%d" % (48 + tt, 64 + 4 * tt))
    a("global_store_dwordx4 v232, v[48:51], s[18:19] sc1")
    a("s_cmp_eq_u32 s26, 3")
    a("s_cbranch_scc1 L_wfin")
    for tt in range(4):
        a("v_bfi_b32 v%d, s36, v24, v%d" % (52 + tt, 80 + 4 * tt))
    a("global_store_dwordx4 v232, v[52:55], s[18:19] offset:256 sc1")
    a.raw("L_wfin:")
    S(11)
    a.raw("L_fin:")
    if st:
        S(15)
        stamps_flush(a, 16, 18, 2, 21, 3, 4)
    a.raw("L_end:")
    a("s_endpgm")
    kernel_desc(a, vgpr=240, accum=240, sgpr=102 if st else 48)
    return file_head(256, 448, LDS_BYTES, STN if st else None) + a.text()

if __name__ == "__main__":
    import json
    out = sys.argv[1]
    kw = json.loads(sys.argv[2]) if len(sys.argv) > 2 else {}
    open(out, "w").write(gen(**kw))
```

```python
KNAME = "standalone__sliding_block_cached__decode_kernel"

HEADER = """; Kernarg layout for this problem (64 bytes, ptrs only, base s[0:1]):
"""

class Asm:
    def __init__(self):
        self.lines = []
    def __call__(self, s=""):
        for l in s.split("\n"):
            self.lines.append(l if (l.strip().endswith(":") or not l.strip()) else "    " + l.strip())
    def raw(self, s):
        self.lines.append(s)
    def text(self):
        return "\n".join(self.lines) + "\n"

def kernel_begin(a, name=KNAME):
    a.raw(".text")
    a.raw(".globl %s" % name)
    a.raw(".p2align 8")
    a.raw(".type %s,@function" % name)
    a.raw("%s:" % name)

def kernel_desc(a, name=KNAME, vgpr=256, sgpr=102, accum=256):
    a.raw('.section .rodata,"a"')
    a.raw(".p2align 6")
    a.raw(".amdhsa_kernel %s" % name)
    a.raw("  .amdhsa_next_free_vgpr %d" % vgpr)
    a.raw("  .amdhsa_next_free_sgpr %d" % sgpr)
    a.raw("  .amdhsa_accum_offset %d" % accum)
    a.raw("  .amdhsa_group_segment_fixed_size 0")
    a.raw("  .amdhsa_kernarg_size 64")
    a.raw("  .amdhsa_user_sgpr_count 2")
    a.raw("  .amdhsa_user_sgpr_kernarg_segment_ptr 1")
    a.raw("  .amdhsa_system_sgpr_workgroup_id_x 1")
    a.raw("  .amdhsa_float_denorm_mode_32 3")
    a.raw(".end_amdhsa_kernel")

def file_head(grid, block, lds, stamps=None):
    s = HEADER
    s += "; @launch grid=(%d,1,1) block=(%d,1,1) lds=%d\n" % (grid, block, lds)
    if stamps:
        s += "; stamps: " + " ".join(stamps) + "\n"
    s += '.amdgcn_target "amdgcn-amd-amdhsa--gfx950"\n'
    return s

def stamp(a, i, on=True):
    if not on:
        return
    a("s_memrealtime s[78:79]")
    a("s_waitcnt lgkmcnt(0)")
    a("s_mov_b32 s%d, s78" % (80 + i))

def stamps_init(a, n, on=True):
    if not on:
        return
    for i in range(n):
        a("s_mov_b32 s%d, 0" % (80 + i))

def stamps_flush(a, n, ws_pair, wg_sgpr, wave_sgpr, vt0, vt1, on=True):
    if not on:
        return
    a("s_mov_b64 exec, -1")
    a("v_mov_b32 v%d, 0" % vt0)
    for i in range(n):
        a("v_writelane_b32 v%d, s%d, %d" % (vt0, 80 + i, i))
    a("s_lshl_b32 s76, s%d, 4" % wg_sgpr)
    a("s_add_u32 s76, s76, s%d" % wave_sgpr)
    a("s_lshl_b32 s76, s76, 6")
    a("s_add_u32 s76, s76, 0x8000000")
    a("v_mbcnt_lo_u32_b32 v%d, -1, 0" % vt1)
    a("v_mbcnt_hi_u32_b32 v%d, -1, v%d" % (vt1, vt1))
    a("v_lshlrev_b32 v%d, 2, v%d" % (vt1, vt1))
    a("v_add_u32 v%d, s76, v%d" % (vt1, vt1))
    a("s_mov_b64 exec, 0xffff")
    a("global_store_dword v%d, v%d, s[%d:%d]" % (vt1, vt0, ws_pair, ws_pair + 1))
    a("s_waitcnt vmcnt(0)")

def diag_tail(a, k, X=4000):
    stamp(a, 15)
    a("s_cmp_eq_u32 s%d, 0" % (80 + k))
    a("s_cselect_b32 s76, s80, s%d" % (80 + k))
    a("s_add_u32 s76, s76, %d" % X)
    a.raw("L_diag:")
    a("s_memrealtime s[78:79]")
    a("s_waitcnt lgkmcnt(0)")
    a("s_sub_u32 s77, s78, s76")
    a("s_cmp_lt_i32 s77, 0")
    a("s_cbranch_scc1 L_diag")
```

```python
import sys
sys.path.insert(0, "exp")
from asmlib import *

WS_EPOCH = 0
WS_Q = 0x1000
WS_S = 0x20000
WS_O = 0x60000
L_V = 0
L_WO = 65536
L_WQ = L_WO + 57344
L_X = L_WQ + 14336
L_Q = L_X + 4096
L_O = L_Q + 1024
L_ST = L_O + 1024
L_FLAG = L_ST + 64
LDS_BYTES = L_FLAG + 64
SPIN = 1 << 20
C_SCALE = 0x3DB8AA3B

STN = ["start", "C.wq", "C.qpub", "C.BX", "C.qgot", "W.K", "W.q", "W.spub", "W.sgot", "W.BV", "W.BC", "W.opub", "L.done", "C.BC", "C.got", "end"]

def gen(st=False, N=12, XK=6, ntk="nt", ntv="nt", ntq="nt", nto="nt", prefetch=True, vkey="none", spin=SPIN, diag=None):
    a = Asm()
    S = lambda i: stamp(a, i, st)
    pol = lambda p: (" " + p) if p else ""
    kernel_begin(a)
    a("s_load_dwordx16 s[4:19], s[0:1], 0")
    a("s_cmp_ge_u32 s2, 256")
    a("s_cbranch_scc1 L_end")
    a("v_lshrrev_b32 v1, 6, v0")
    a("v_and_b32 v0, 63, v0                 ; lane")
    a("s_and_b32 s20, s2, 7                 ; kvh")
    a("v_readfirstlane_b32 s21, v1          ; wave")
    a("s_lshr_b32 s22, s2, 3                ; r = 8b + j")
    a("s_lshr_b32 s23, s2, 6                ; b")
    a("s_and_b32 s24, s22, 7                ; j")
    if st:
        stamps_init(a, 16)
        S(0)
    a("s_lshl_b32 s25, s23, 3")
    a("s_add_u32 s25, s25, s20")
    a("s_cmp_ge_u32 s21, 3")
    a("s_cbranch_scc1 L_work")
    a("s_cmp_ge_u32 s21, 1")
    a("s_cbranch_scc1 L_load")
    if prefetch:
        a("s_getpc_b64 s[26:27]")
        a("v_lshlrev_b32 v2, 7, v0")
        a("v_min_u32 v2, L_end - L_pc0, v2")
        a.raw("L_pc0:")
        a("global_load_dword v3, v2, s[26:27]")
    a("v_lshrrev_b32 v4, 1, v0")
    a("v_and_b32 v5, 3, v4")
    a("v_bfe_u32 v6, v0, 3, 2")
    a("v_lshl_add_u32 v5, v6, 3, v5")
    a("v_lshrrev_b32 v6, 5, v0")
    a("v_lshl_add_u32 v5, v6, 2, v5")
    a("v_lshlrev_b32 v5, 13, v5")
    a("v_and_b32 v6, 1, v0")
    a("v_lshl_add_u32 v5, v6, 4, v5")
    a("s_lshl_b32 s28, s20, 10")
    a("s_lshl_b32 s29, s22, 5")
    a("s_add_u32 s28, s28, s29")
    a("v_add_u32 v5, s28, v5")
    a("v_lshlrev_b32 v6, 4, v0")
    a("s_mov_b32 m0, %d" % L_WQ)
    a("s_waitcnt lgkmcnt(0)")
    a("s_load_dword s30, s[18:19], %d" % WS_EPOCH)
    for i in range(14):
        a("global_load_lds_dwordx4 v5, s[10:11]" + pol(ntq))
        a("s_add_u32 m0, m0, 1024")
        if i < 13:
            a("v_add_u32 v5, 0x40000, v5")
        else:
            a("s_nop 0")
    for i in range(3):
        a("global_load_lds_dwordx4 v6, s[4:5] offset:%d" % (1024 * i))
    a("s_mov_b32 exec_hi, 0")
    a("global_load_lds_dwordx4 v6, s[4:5] offset:3072")
    a("s_mov_b64 exec, -1")
    a("s_barrier")
    a("v_mov_b32 v7, %d" % L_FLAG)
    a("v_mov_b32 v8, 0")
    a("ds_write_b32 v7, v8")
    a("v_lshlrev_b32 v9, 3, v0")
    a("v_add_u32 v10, %d, v9" % L_WQ)
    a("v_and_b32 v11, 3, v0")
    a("v_mul_u32_u24 v11, 896, v11")
    a("v_lshrrev_b32 v12, 4, v0             ; g")
    a("v_lshl_add_u32 v11, v12, 4, v11")
    a("v_add_u32 v11, %d, v11" % L_X)
    a("v_and_b32 v13, 15, v0")
    a("v_lshlrev_b32 v13, 11, v13")
    a("v_lshl_add_u32 v13, v12, 4, v13")
    a("s_lshl_b32 s28, s20, 13")
    a("s_lshl_b32 s29, s22, 6")
    a("s_add_u32 s29, s29, s28")
    a("s_add_u32 s29, s29, %d" % WS_Q)
    a("v_add_u32 v13, s29, v13")
    a("s_lshl_b32 s29, s23, 11")
    a("s_add_u32 s29, s29, s28")
    a("s_add_u32 s29, s29, %d" % WS_Q)
    a("v_add_u32 v14, s29, v6")
    a("v_add_u32 v15, %d, v9" % L_Q)
    a("s_waitcnt vmcnt(0) lgkmcnt(0)")
    S(1)
    a("s_add_u32 s30, s30, 1")
    a("v_mov_b32 v22, s30")
    a("v_mov_b32 v23, s30")
    def qread(s):
        r = 32 + 8 * s
        a("ds_read_b64_tr_b16 v[%d:%d], v10 offset:%d" % (r, r + 1, 1024 * s))
        a("ds_read_b64_tr_b16 v[%d:%d], v10 offset:%d" % (r + 2, r + 3, 1024 * s + 512))
        a("ds_read_b128 v[%d:%d], v11 offset:%d" % (r + 4, r + 7, 64 * s))
    AH = 4
    for s in range(AH):
        qread(s)
    for s in range(14):
        if s + AH < 14:
            qread(s + AH)
        a("s_waitcnt lgkmcnt(%d)" % (3 * min(AH, 13 - s)))
        r = 32 + 8 * s
        a("v_mfma_f32_16x16x32_bf16 v[16:19], v[%d:%d], v[%d:%d], %s" % (r, r + 3, r + 4, r + 7, "0" if s == 0 else "v[16:19]"))
    a("s_and_b32 s31, s30, 0x1fff")
    a("s_or_b32 s31, s31, 0x2000")
    a("s_and_b32 s32, s30, 0xff")
    a("s_mov_b32 exec_lo, 0x000f000f")
    a("s_mov_b32 exec_hi, 0x000f000f")
    a("s_nop 3")
    a("v_cvt_pk_bf16_f32 v20, v16, v17")
    a("v_cvt_pk_bf16_f32 v21, v18, v19")
    a("global_store_dwordx4 v13, v[20:23], s[18:19] sc1")
    a("s_mov_b64 exec, -1")
    S(2)
    a("v_mov_b32 v8, s31")
    a("s_mov_b32 s33, %d" % spin)
    a("s_barrier                            ; BX")
    S(3)
    a.raw("L_qpoll:")
    a("global_load_dwordx4 v[24:27], v14, s[18:19] sc1")
    a("global_load_dwordx4 v[28:31], v14, s[18:19] offset:1024 sc1")
    a("s_sub_u32 s33, s33, 1")
    a("s_cbranch_scc1 L_qgot")
    a("s_waitcnt vmcnt(0)")
    for r in (26, 27, 30, 31):
        a("v_cmpx_eq_u32 vcc, s30, v%d" % r)
    a("s_cmp_eq_u64 exec, -1")
    a("s_mov_b64 exec, -1")
    a("s_cbranch_scc0 L_qpoll")
    a.raw("L_qgot:")
    a("ds_write_b64 v15, v[24:25]")
    a("ds_write_b64 v15, v[28:29] offset:512")
    a("ds_write_b32 v7, v8")
    S(4)
    a("s_lshl_b32 s34, s20, 3")
    a("s_add_u32 s34, s34, s24              ; m")
    a("s_mul_i32 s28, s23, %d" % (64 * 1792))
    a("s_lshl_b32 s29, s34, 5")
    a("s_add_u32 s28, s28, s29")
    a("s_add_u32 s28, s28, %d" % WS_O)
    a("v_mul_u32_u24 v14, 1792, v0")
    a("v_add_u32 v14, s28, v14")
    a("s_mul_i32 s28, s23, 896")
    a("s_lshl_b32 s29, s20, 7")
    a("s_add_u32 s28, s28, s29")
    a("s_lshl_b32 s29, s24, 2")
    a("s_add_u32 s28, s28, s29")
    a("v_lshlrev_b32 v13, 5, v12")
    a("v_add_u32 v13, s28, v13")
    a("v_mov_b32 v9, s32")
    a("s_mov_b32 s33, %d" % spin)
    a("s_waitcnt lgkmcnt(0)")
    a("s_barrier                            ; BV")
    a("s_barrier                            ; BC")
    S(13)
    a("s_cmp_ge_u32 s34, 56")
    a("s_cbranch_scc1 L_fin")
    a.raw("L_opoll:")
    a("global_load_dwordx4 v[24:27], v14, s[18:19] sc1")
    a("global_load_dwordx4 v[28:31], v14, s[18:19] offset:16 sc1")
    a("s_sub_u32 s33, s33, 1")
    a("s_cbranch_scc1 L_ogot")
    a("s_waitcnt vmcnt(0)")
    for r in range(24, 32):
        a("v_cmpx_eq_u32_sdwa vcc, v%d, v9 src0_sel:BYTE_0 src1_sel:DWORD" % r)
    a("s_cmp_eq_u64 exec, -1")
    a("s_mov_b64 exec, -1")
    a("s_cbranch_scc0 L_opoll")
    a.raw("L_ogot:")
    S(14)
    a("s_nop 1")
    a("v_permlane32_swap_b32 v24, v26")
    a("v_permlane32_swap_b32 v25, v27")
    a("v_permlane32_swap_b32 v28, v30")
    a("v_permlane32_swap_b32 v29, v31")
    a("v_add_f32 v24, v24, v26")
    a("v_add_f32 v25, v25, v27")
    a("v_add_f32 v28, v28, v30")
    a("v_add_f32 v29, v29, v31")
    a("s_nop 0")
    a("v_permlane16_swap_b32 v24, v25")
    a("v_permlane16_swap_b32 v28, v29")
    a("v_add_f32 v24, v24, v25")
    a("v_add_f32 v28, v28, v29")
    for k in (8, 4, 2, 1):
        a("s_nop 0")
        a("v_add_f32_dpp v24, v24, v24 row_ror:%d row_mask:0xf bank_mask:0xf" % k)
        a("v_add_f32_dpp v28, v28, v28 row_ror:%d row_mask:0xf bank_mask:0xf" % k)
    a("s_mov_b32 exec_lo, 0x00010001")
    a("s_mov_b32 exec_hi, 0x00010001")
    a("v_cvt_pk_bf16_f32 v24, v24, v28")
    a("global_store_dword v13, v24, s[14:15]")
    a("s_cmp_lg_u32 s2, 0")
    a("s_cbranch_scc1 L_fin")
    a("s_mov_b64 exec, 1")
    a("v_mov_b32 v13, %d" % WS_EPOCH)
    a("global_store_dword v13, v22, s[18:19]")
    a("s_branch L_fin")
    a.raw("L_load:")
    a("s_sub_u32 s26, s21, 1")
    a("v_lshrrev_b32 v1, 3, v0              ; r8")
    a("v_mul_u32_u24 v2, 896, v1")
    a("v_and_b32 v1, 6, v1")
    a("v_xor_b32 v1, v1, v0")
    a("v_and_b32 v1, 7, v1")
    a("v_lshl_add_u32 v2, v1, 4, v2")
    a("v_lshrrev_b32 v1, 2, v0")
    a("v_lshlrev_b32 v3, 9, v1")
    a("v_lshrrev_b32 v1, 3, v0")
    a("v_and_b32 v1, 2, v1")
    a("v_xor_b32 v1, v1, v0")
    a("v_and_b32 v1, 3, v1")
    a("v_lshl_add_u32 v3, v1, 4, v3")
    a("s_lshl_b32 s27, s20, 1")
    a("s_add_u32 s27, s27, s26")
    a("s_lshl_b32 s27, s27, 3")
    a("s_add_u32 s27, s27, s24")
    a("s_mul_i32 s27, s27, %d               ; first wo row * 896" % (32 * 896))
    a("s_lshl_b32 s28, s25, 21")
    a("s_lshl_b32 s29, s24, 6")
    a("s_add_u32 s28, s28, s29")
    a("s_add_u32 s28, s28, %d" % (3072 * 512))
    a("s_mul_i32 s29, s26, 28672")
    a("s_add_u32 s29, s29, %d" % L_WO)
    a("s_waitcnt lgkmcnt(0)")
    a("s_add_u32 s36, s12, s27")
    a("s_addc_u32 s37, s13, 0")
    a("s_mov_b32 s38, 28672")
    a("s_mov_b32 s39, 0x20000")
    a("s_add_u32 s40, s8, s28")
    a("s_addc_u32 s41, s9, 0")
    a("s_mov_b32 s42, %d" % (1024 * 512 - 448))
    a("s_mov_b32 s43, 0x20000")
    if vkey == "none":
        a("s_mov_b32 s44, s26")
    elif vkey == "kb":
        a("s_lshl_b32 s44, s25, 1")
        a("s_or_b32 s44, s44, s26")
    elif vkey == "jb":
        a("s_lshr_b32 s44, s22, 1")
        a("s_lshl_b32 s44, s44, 1")
        a("s_or_b32 s44, s44, s26")
    a("s_barrier                            ; B0")
    a("s_mov_b32 m0, s29")
    a("s_mov_b32 s30, 0")
    a("s_barrier                            ; BX")
    a.raw("L_wo:")
    for rb in range(4):
        a("s_add_u32 s31, s30, %d" % (7168 * rb))
        a("s_waitcnt vmcnt(%d)" % (N - 1))
        a("buffer_load_dwordx4 v2, s[36:39], s31 offen%s lds" % pol(nto))
        a("s_add_u32 m0, m0, 1024")
    a("s_add_u32 s30, s30, 128")
    a("s_cmp_lt_u32 s30, 896")
    a("s_cbranch_scc1 L_wo")
    a("s_mov_b32 s30, 0")
    a.raw("L_v:")
    a("s_xor_b32 s31, s30, s44")
    a("s_lshl_b32 m0, s31, 10")
    a("s_lshl_b32 s31, s31, 13")
    a("s_add_u32 s30, s30, 2")
    a("s_cmp_lt_u32 s30, 64")
    a("s_waitcnt vmcnt(%d)" % (N - 1))
    a("buffer_load_dwordx4 v3, s[40:43], s31 offen%s lds" % pol(ntv))
    a("s_cbranch_scc1 L_v")
    a("s_waitcnt vmcnt(0)")
    S(12)
    a("s_barrier                            ; BV")
    if diag is not None:
        a("s_barrier")
    a("s_branch L_fin")
    a.raw("L_work:")
    a("s_sub_u32 s26, s21, 3                ; w")
    a("v_and_b32 v3, 3, v0                  ; lane&3")
    a("v_bfe_u32 v4, v0, 2, 2               ; (lane>>2)&3")
    a("v_lshrrev_b32 v5, 4, v0              ; g")
    a("v_lshlrev_b32 v1, 4, v3")
    a("v_lshl_add_u32 v1, v4, 11, v1")
    a("v_lshl_add_u32 v1, v5, 6, v1")
    a("v_add_u32 v2, 8192, v1")
    a("s_lshl_b32 s27, s24, 2")
    a("s_add_u32 s27, s27, s26")
    a("s_lshl_b32 s28, s25, 21")
    a("s_lshl_b32 s29, s27, 14")
    a("s_add_u32 s28, s28, s29")
    a("s_add_u32 s28, s28, %d" % (3072 * 512))
    a("s_waitcnt lgkmcnt(0)")
    a("s_add_u32 s30, s6, s28")
    a("s_addc_u32 s31, s7, 0")
    a("s_barrier                            ; B0")
    for be in range(2):
        for r in range(4):
            for t in range(2):
                d = 64 + 4 * (8 * be + 2 * r + t)
                a("global_load_dwordx4 v[%d:%d], v%d, s[30:31] offset:%d%s" % (d, d + 3, 1 + be, 512 * r + 256 * t, pol(ntk)))
    a("v_and_b32 v6, 1, v0                  ; h")
    a("v_lshlrev_b32 v7, 9, v6")
    a("v_lshl_add_u32 v7, v5, 6, v7")
    a("v_lshl_add_u32 v7, v4, 4, v7")
    a("v_add_u32 v7, %d, v7" % L_Q)
    a("v_mov_b32 v8, %d" % L_FLAG)
    a("v_lshl_add_u32 v9, v5, 1, v6")
    a("v_lshlrev_b32 v9, 5, v9")
    a("s_lshl_b32 s28, s25, 13")
    a("s_add_u32 s28, s28, %d" % WS_S)
    a("s_lshl_b32 s29, s27, 8")
    a("s_add_u32 s29, s29, s28")
    a("v_lshl_add_u32 v10, v4, 4, v9")
    a("v_add_u32 v10, s29, v10")
    a("s_lshl_b32 s29, s26, 11")
    a("s_add_u32 s29, s29, s28")
    a("v_bfe_u32 v11, v0, 1, 3")
    a("v_lshl_add_u32 v11, v11, 8, v9")
    a("v_add_u32 v11, s29, v11")
    a("v_lshrrev_b32 v12, 2, v0")
    a("v_lshlrev_b32 v12, 6, v12")
    a("v_lshl_add_u32 v12, v3, 3, v12")
    a("v_and_b32 v13, 1, v5")
    a("v_lshl_add_u32 v12, v13, 5, v12")
    a("s_lshl_b32 s29, s26, 14")
    a("v_add_u32 v12, s29, v12")
    a("v_xor_b32 v13, 32, v12")
    a("v_lshrrev_b32 v14, 2, v0")
    a("v_lshlrev_b32 v14, 7, v14")
    a("v_lshl_add_u32 v14, v3, 3, v14")
    a("v_bfe_u32 v15, v0, 3, 2")
    a("v_lshl_add_u32 v14, v15, 5, v14")
    a("s_lshl_b32 s29, s26, 13")
    a("s_add_u32 s29, s29, %d" % L_WO)
    a("v_add_u32 v224, s29, v14")
    a("v_xor_b32 v225, 32, v224")
    a("v_xor_b32 v226, 64, v224")
    a("v_xor_b32 v227, 96, v224")
    a("s_lshl_b32 s29, s26, 3")
    a("s_add_u32 s29, s29, %d" % L_ST)
    a("v_lshlrev_b32 v228, 5, v6")
    a("v_add_u32 v228, s29, v228")
    a("v_bfe_u32 v229, v0, 3, 1")
    a("v_lshl_add_u32 v229, v229, 2, v3")
    a("v_lshlrev_b32 v229, 3, v229")
    a("v_add_u32 v229, %d, v229" % L_ST)
    a("s_lshl_b32 s29, s26, 4")
    a("s_add_u32 s29, s29, %d" % L_O)
    a("v_lshlrev_b32 v230, 8, v5")
    a("v_lshl_add_u32 v230, v6, 7, v230")
    a("v_add_u32 v230, s29, v230")
    a("v_lshlrev_b32 v232, 4, v0")
    a("v_add_u32 v231, %d, v232" % L_O)
    a("s_lshl_b32 s28, s25, 3")
    a("s_add_u32 s28, s28, s24")
    a("s_mul_i32 s28, s28, 1792")
    a("s_lshl_b32 s29, s26, 9")
    a("s_add_u32 s28, s28, s29")
    a("s_add_u32 s28, s28, %d" % WS_O)
    a("v_add_u32 v232, s28, v232")
    for i in range(4):
        a("v_mov_b32 v%d, 0x3f803f80" % (236 + i))
    a("s_mov_b32 s33, %d" % spin)
    a("s_mov_b32 s35, 0x%x" % C_SCALE)
    a("s_waitcnt vmcnt(%d)" % XK)
    a("s_barrier                            ; BX")
    a("s_waitcnt vmcnt(0)")
    S(5)
    a.raw("L_qspin:")
    a("ds_read_b32 v24, v8")
    a("ds_read_b128 v[16:19], v7")
    a("ds_read_b128 v[20:23], v7 offset:256")
    a("s_sub_u32 s33, s33, 1")
    a("s_cbranch_scc1 L_qseen")
    a("s_waitcnt lgkmcnt(0)")
    a("v_readfirstlane_b32 s32, v24")
    a("s_cmp_eq_u32 s32, 0")
    a("s_cbranch_scc1 L_qspin")
    a.raw("L_qseen:")
    S(6)
    for T in range(8):
        d = 32 + 4 * T; k = 64 + 8 * T
        a("v_mfma_f32_16x16x32_bf16 v[%d:%d], v[%d:%d], v[16:19], 0" % (d, d + 3, k, k + 3))
        a("v_mfma_f32_16x16x32_bf16 v[%d:%d], v[%d:%d], v[20:23], v[%d:%d]" % (d, d + 3, k + 4, k + 7, d, d + 3))
    a("s_lshl_b32 s34, s32, 16")
    for be in range(2):
        for step in range(3):
            for r in range(4):
                d = 32 + 4 * (4 * be + r)
                src1 = d + be if step == 0 else 24 + r
                a("v_add_f32_dpp v%d, v%d, v%d row_ror:%d row_mask:0xf bank_mask:0x%x" % (24 + r, d + ((be + step + 1) & 3), src1, 12 - 4 * step, 1 << be))
    a("s_mov_b32 exec_lo, 0x00330033")
    a("s_mov_b32 exec_hi, 0x00330033")
    for r in range(4):
        a("v_cvt_pk_bf16_f32 v%d, s34, v%d" % (28 + r, 24 + r))
    a("global_store_dwordx4 v10, v[28:31], s[18:19] sc1")
    a("s_mov_b64 exec, -1")
    S(7)
    a("s_mov_b32 s33, %d" % spin)
    a.raw("L_spoll:")
    a("global_load_dwordx4 v[32:35], v11, s[18:19] sc1")
    a("global_load_dwordx4 v[36:39], v11, s[18:19] offset:16 sc1")
    a("s_sub_u32 s33, s33, 1")
    a("s_cbranch_scc1 L_sgot")
    a("s_waitcnt vmcnt(0)")
    for r in range(32, 40):
        a("v_cmpx_eq_u16 vcc, s32, v%d" % r)
    a("s_cmp_eq_u64 exec, -1")
    a("s_mov_b64 exec, -1")
    a("s_cbranch_scc0 L_spoll")
    a.raw("L_sgot:")
    S(8)
    for r in range(32, 40):
        a("v_and_b32 v%d, 0xffff0000, v%d" % (r, r))
    a("v_max3_f32 v24, v32, v33, v34")
    a("v_max3_f32 v25, v35, v36, v37")
    a("v_max3_f32 v24, v38, v39, v24")
    a("v_max_f32 v24, v24, v25")
    for k in (2, 4, 8):
        a("s_nop 1")
        a("v_max_f32_dpp v24, v24, v24 row_ror:%d row_mask:0xf bank_mask:0xf" % k)
    a("v_mov_b32 v25, v24")
    a("s_nop 1")
    a("v_permlane16_swap_b32 v24, v25")
    a("v_max_f32 v24, v24, v25")
    a("v_mov_b32 v25, v24")
    a("s_nop 1")
    a("v_permlane32_swap_b32 v24, v25")
    a("v_max_f32 v24, v24, v25")
    a("v_mul_f32 v24, s35, v24")
    for r in range(32, 40):
        a("v_fma_f32 v%d, v%d, s35, -v24" % (r, r))
    for r in range(32, 40):
        a("v_exp_f32 v%d, v%d" % (r, r))
    for i in range(4):
        a("v_cvt_pk_bf16_f32 v%d, v%d, v%d" % (64 + i, 32 + 2 * i, 33 + 2 * i))
    a("s_nop 1")
    a("v_mfma_f32_16x16x32_bf16 v[48:51], v[236:239], v[64:67], 0")
    for u in range(1, 8):
        for i in range(4):
            a("v_mov_b32_dpp v%d, v%d row_shl:%d row_mask:0xf bank_mask:0xf" % (64 + 4 * u + i, 64 + i, 2 * u))
    a("v_add_f32_dpp v25, v48, v48 row_ror:2 row_mask:0xf bank_mask:0xf")
    for k in (4, 8):
        a("s_nop 1")
        a("v_add_f32_dpp v25, v25, v25 row_ror:%d row_mask:0xf bank_mask:0xf" % k)
    a("s_mov_b64 exec, 3")
    a("ds_write_b64 v228, v[24:25]")
    a("s_mov_b64 exec, -1")
    a("s_waitcnt lgkmcnt(0)")
    a("s_barrier                            ; BV")
    S(9)
    reads = ["ds_read_b64 v[26:27], v229"]
    for u in range(8):
        for ct in range(2):
            d = 96 + 8 * u + 4 * ct
            reads.append("ds_read_b64_tr_b16 v[%d:%d], v%d offset:%d" % (d, d + 1, 12 + ct, 2048 * u))
            reads.append("ds_read_b64_tr_b16 v[%d:%d], v%d offset:%d" % (d + 2, d + 3, 12 + ct, 2048 * u + 1024))
    for c in range(2):
        for tt in range(4):
            for h in range(2):
                d = 160 + 4 * (8 * c + 2 * tt + h)
                reads.append("ds_read_b64_tr_b16 v[%d:%d], v%d offset:%d" % (d, d + 1, 224 + tt, 28672 * h + 4096 * c))
                reads.append("ds_read_b64_tr_b16 v[%d:%d], v%d offset:%d" % (d + 2, d + 3, 224 + tt, 28672 * h + 4096 * c + 2048))
    scale_ops = [
        "v_max_f32_dpp v28, v26, v26 quad_perm:[1,0,3,2] row_mask:0xf bank_mask:0xf",
        "v_max_f32_dpp v28, v28, v28 quad_perm:[2,3,0,1] row_mask:0xf bank_mask:0xf",
        "v_sub_f32 v28, v26, v28",
        "v_exp_f32 v28, v28",
        "v_mul_f32 v29, v28, v27",
        "v_add_f32_dpp v29, v29, v29 quad_perm:[1,0,3,2] row_mask:0xf bank_mask:0xf",
        "v_add_f32_dpp v29, v29, v29 quad_perm:[2,3,0,1] row_mask:0xf bank_mask:0xf",
        "v_rcp_f32 v29, v29",
        "v_mul_f32 v28, v28, v29",
    ]
    issued = 0
    WIN = 13
    while issued < WIN:
        a(reads[issued]); issued += 1
    for u in range(8):
        for ct in range(2):
            need = 1 + 4 * u + 2 * ct + 2
            a("s_waitcnt lgkmcnt(%d)" % (issued - need))
            d = 96 + 8 * u + 4 * ct
            acc = 52 + 4 * ct
            a("v_mfma_f32_16x16x32_bf16 v[%d:%d], v[%d:%d], v[%d:%d], %s" % (acc, acc + 3, d, d + 3, 64 + 4 * u, 67 + 4 * u, "0" if u == 0 else "v[%d:%d]" % (acc, acc + 3)))
            for _ in range(2):
                a(reads[issued]); issued += 1
            if scale_ops:
                a(scale_ops.pop(0))
    assert not scale_ops
    for _ in range(8):
        a(reads[issued]); issued += 1
    a("s_mov_b32 exec_lo, 0x00030003")
    a("s_mov_b32 exec_hi, 0x00030003")
    a("ds_write_b128 v230, v[52:55]")
    a("ds_write_b128 v230, v[56:59] offset:64")
    a("s_mov_b64 exec, -1")
    a("s_waitcnt lgkmcnt(0)")
    a("s_barrier                            ; BC")
    a("ds_read_b128 v[32:35], v231")
    rest = len(reads) - issued
    while issued < len(reads):
        a(reads[issued]); issued += 1
    a("s_waitcnt lgkmcnt(%d)" % rest)
    S(10)
    for i in range(4):
        a("v_mul_f32 v%d, v%d, v28" % (32 + i, 32 + i))
    for qp in ("[1,0,3,2]", "[2,3,0,1]"):
        for i in range(4):
            a("v_add_f32_dpp v%d, v%d, v%d quad_perm:%s row_mask:0xf bank_mask:0xf" % (32 + i, 32 + i, 32 + i, qp))
    a("v_cvt_pk_bf16_f32 v36, v32, v33")
    a("v_cvt_pk_bf16_f32 v37, v34, v35")
    a("s_mov_b32 s36, 0xff")
    a("v_mov_b32 v24, s32")
    for k in range(1, 4):
        a("v_mov_b32_dpp v%d, v36 row_ror:%d row_mask:0xf bank_mask:0xf" % (36 + 2 * k, 16 - 4 * k))
        a("v_mov_b32_dpp v%d, v37 row_ror:%d row_mask:0xf bank_mask:0xf" % (37 + 2 * k, 16 - 4 * k))
    a("s_waitcnt lgkmcnt(0)")
    a("s_nop 0")
    for c in range(2):
        for tt in range(4):
            acc = 64 + 4 * (4 * c + tt)
            d = 160 + 4 * (8 * c + 2 * tt)
            a("v_mfma_f32_16x16x32_bf16 v[%d:%d], v[36:39], v[%d:%d], 0" % (acc, acc + 3, d, d + 3))
            a("v_mfma_f32_16x16x32_bf16 v[%d:%d], v[40:43], v[%d:%d], v[%d:%d]" % (acc, acc + 3, d + 4, d + 7, acc, acc + 3))
    a("s_mov_b64 exec, 0xffff")
    for tt in range(4):
        a("v_bfi_b32 v%d, s36, v24, v%d" % (48 + tt, 64 + 4 * tt))
    a("global_store_dwordx4 v232, v[48:51], s[18:19] sc1")
    a("s_cmp_eq_u32 s26, 3")
    a("s_cbranch_scc1 L_wfin")
    for tt in range(4):
        a("v_bfi_b32 v%d, s36, v24, v%d" % (52 + tt, 80 + 4 * tt))
    a("global_store_dwordx4 v232, v[52:55], s[18:19] offset:256 sc1")
    a.raw("L_wfin:")
    S(11)
    a.raw("L_fin:")
    if st and diag is not None:
        diag_tail(a, diag)
    elif st:
        S(15)
        stamps_flush(a, 16, 18, 2, 21, 3, 4)
    a.raw("L_end:")
    a("s_endpgm")
    kernel_desc(a, vgpr=240, accum=240, sgpr=102 if st else 48)
    return file_head(256, 448, LDS_BYTES, STN if st else None) + a.text()

if __name__ == "__main__":
    import json
    out = sys.argv[1]
    kw = json.loads(sys.argv[2]) if len(sys.argv) > 2 else {}
    open(out, "w").write(gen(**kw))
```

```python
import sys
sys.path.insert(0, "exp")
from asmlib import *

WS_EPOCH = 0
WS_Q = 0x1000
WS_S = 0x20000
WS_O = 0x60000
L_V = 0
L_WO = 65536
L_WQ = L_WO + 57344
L_X = L_WQ + 14336
L_Q = L_X + 4096
L_O = L_Q + 1024
L_ST = L_O + 1024
L_FLAG = L_ST + 64
LDS_BYTES = L_FLAG + 64
SPIN = 1 << 20
C_SCALE = 0x3DB8AA3B

STN = ["start", "C.wq", "C.qpub", "C.BX", "C.qgot", "W.K", "W.q", "W.spub", "W.sgot", "W.BV", "W.BC", "W.opub", "L.done", "C.BC", "C.got", "end"]

def gen(st=False, N=12, XK=6, ntk="nt", ntv="nt", ntq="nt", nto="nt", prefetch=True, vkey="none", spin=SPIN, diag=None, early=False, only=None, vg=240, ldsb=LDS_BYTES):
    a = Asm()
    S = lambda i: stamp(a, i, st)
    pol = lambda p: (" " + p) if p else ""
    kernel_begin(a)
    if early:
        a("s_memrealtime s[96:97]")
    a("s_load_dwordx16 s[4:19], s[0:1], 0")
    a("s_cmp_ge_u32 s2, 256")
    a("s_cbranch_scc1 L_end")
    a("v_lshrrev_b32 v1, 6, v0")
    a("v_and_b32 v0, 63, v0                 ; lane")
    a("s_and_b32 s20, s2, 7                 ; kvh")
    a("v_readfirstlane_b32 s21, v1          ; wave")
    a("s_lshr_b32 s22, s2, 3                ; r = 8b + j")
    a("s_lshr_b32 s23, s2, 6                ; b")
    a("s_and_b32 s24, s22, 7                ; j")
    if st:
        stamps_init(a, 16)
        S(0)
        if early:
            a("s_mov_b32 s80, s96")
    a("s_lshl_b32 s25, s23, 3")
    a("s_add_u32 s25, s25, s20")
    a("s_cmp_ge_u32 s21, 3")
    a("s_cbranch_scc1 L_work")
    a("s_cmp_ge_u32 s21, 1")
    a("s_cbranch_scc1 L_load")
    if prefetch:
        a("s_getpc_b64 s[26:27]")
        a("v_lshlrev_b32 v2, 7, v0")
        a("v_min_u32 v2, L_end - L_pc0, v2")
        a.raw("L_pc0:")
        a("global_load_dword v3, v2, s[26:27]")
    a("v_lshrrev_b32 v4, 1, v0")
    a("v_and_b32 v5, 3, v4")
    a("v_bfe_u32 v6, v0, 3, 2")
    a("v_lshl_add_u32 v5, v6, 3, v5")
    a("v_lshrrev_b32 v6, 5, v0")
    a("v_lshl_add_u32 v5, v6, 2, v5")
    a("v_lshlrev_b32 v5, 13, v5")
    a("v_and_b32 v6, 1, v0")
    a("v_lshl_add_u32 v5, v6, 4, v5")
    a("s_lshl_b32 s28, s20, 10")
    a("s_lshl_b32 s29, s22, 5")
    a("s_add_u32 s28, s28, s29")
    a("v_add_u32 v5, s28, v5")
    a("v_lshlrev_b32 v6, 4, v0")
    a("s_mov_b32 m0, %d" % L_WQ)
    a("s_waitcnt lgkmcnt(0)")
    a("s_load_dword s30, s[18:19], %d" % WS_EPOCH)
    for i in range(14):
        a("global_load_lds_dwordx4 v5, s[10:11]" + pol(ntq))
        a("s_add_u32 m0, m0, 1024")
        if i < 13:
            a("v_add_u32 v5, 0x40000, v5")
        else:
            a("s_nop 0")
    for i in range(3):
        a("global_load_lds_dwordx4 v6, s[4:5] offset:%d" % (1024 * i))
    a("s_mov_b32 exec_hi, 0")
    a("global_load_lds_dwordx4 v6, s[4:5] offset:3072")
    a("s_mov_b64 exec, -1")
    a("s_barrier")
    a("v_mov_b32 v7, %d" % L_FLAG)
    a("v_mov_b32 v8, 0")
    a("ds_write_b32 v7, v8")
    a("v_lshlrev_b32 v9, 3, v0")
    a("v_add_u32 v10, %d, v9" % L_WQ)
    a("v_and_b32 v11, 3, v0")
    a("v_mul_u32_u24 v11, 896, v11")
    a("v_lshrrev_b32 v12, 4, v0             ; g")
    a("v_lshl_add_u32 v11, v12, 4, v11")
    a("v_add_u32 v11, %d, v11" % L_X)
    a("v_and_b32 v13, 15, v0")
    a("v_lshlrev_b32 v13, 11, v13")
    a("v_lshl_add_u32 v13, v12, 4, v13")
    a("s_lshl_b32 s28, s20, 13")
    a("s_lshl_b32 s29, s22, 6")
    a("s_add_u32 s29, s29, s28")
    a("s_add_u32 s29, s29, %d" % WS_Q)
    a("v_add_u32 v13, s29, v13")
    a("s_lshl_b32 s29, s23, 11")
    a("s_add_u32 s29, s29, s28")
    a("s_add_u32 s29, s29, %d" % WS_Q)
    a("v_add_u32 v14, s29, v6")
    a("v_add_u32 v15, %d, v9" % L_Q)
    a("s_waitcnt vmcnt(0) lgkmcnt(0)")
    S(1)
    a("s_add_u32 s30, s30, 1")
    a("v_mov_b32 v22, s30")
    a("v_mov_b32 v23, s30")
    def qread(s):
        r = 32 + 8 * s
        a("ds_read_b64_tr_b16 v[%d:%d], v10 offset:%d" % (r, r + 1, 1024 * s))
        a("ds_read_b64_tr_b16 v[%d:%d], v10 offset:%d" % (r + 2, r + 3, 1024 * s + 512))
        a("ds_read_b128 v[%d:%d], v11 offset:%d" % (r + 4, r + 7, 64 * s))
    AH = 4
    for s in range(AH):
        qread(s)
    for s in range(14):
        if s + AH < 14:
            qread(s + AH)
        a("s_waitcnt lgkmcnt(%d)" % (3 * min(AH, 13 - s)))
        r = 32 + 8 * s
        a("v_mfma_f32_16x16x32_bf16 v[16:19], v[%d:%d], v[%d:%d], %s" % (r, r + 3, r + 4, r + 7, "0" if s == 0 else "v[16:19]"))
    a("s_and_b32 s31, s30, 0x1fff")
    a("s_or_b32 s31, s31, 0x2000")
    a("s_and_b32 s32, s30, 0xff")
    a("s_mov_b32 exec_lo, 0x000f000f")
    a("s_mov_b32 exec_hi, 0x000f000f")
    a("s_nop 3")
    a("v_cvt_pk_bf16_f32 v20, v16, v17")
    a("v_cvt_pk_bf16_f32 v21, v18, v19")
    a("global_store_dwordx4 v13, v[20:23], s[18:19] sc1")
    a("s_mov_b64 exec, -1")
    S(2)
    a("v_mov_b32 v8, s31")
    a("s_mov_b32 s33, %d" % spin)
    a("s_barrier                            ; BX")
    S(3)
    a.raw("L_qpoll:")
    a("global_load_dwordx4 v[24:27], v14, s[18:19] sc1")
    a("global_load_dwordx4 v[28:31], v14, s[18:19] offset:1024 sc1")
    a("s_sub_u32 s33, s33, 1")
    a("s_cbranch_scc1 L_qgot")
    a("s_waitcnt vmcnt(0)")
    for r in (26, 27, 30, 31):
        a("v_cmpx_eq_u32 vcc, s30, v%d" % r)
    a("s_cmp_eq_u64 exec, -1")
    a("s_mov_b64 exec, -1")
    a("s_cbranch_scc0 L_qpoll")
    a.raw("L_qgot:")
    a("ds_write_b64 v15, v[24:25]")
    a("ds_write_b64 v15, v[28:29] offset:512")
    a("ds_write_b32 v7, v8")
    S(4)
    a("s_lshl_b32 s34, s20, 3")
    a("s_add_u32 s34, s34, s24              ; m")
    a("s_mul_i32 s28, s23, %d" % (64 * 1792))
    a("s_lshl_b32 s29, s34, 5")
    a("s_add_u32 s28, s28, s29")
    a("s_add_u32 s28, s28, %d" % WS_O)
    a("v_mul_u32_u24 v14, 1792, v0")
    a("v_add_u32 v14, s28, v14")
    a("s_mul_i32 s28, s23, 896")
    a("s_lshl_b32 s29, s20, 7")
    a("s_add_u32 s28, s28, s29")
    a("s_lshl_b32 s29, s24, 2")
    a("s_add_u32 s28, s28, s29")
    a("v_lshlrev_b32 v13, 5, v12")
    a("v_add_u32 v13, s28, v13")
    a("v_mov_b32 v9, s32")
    a("s_mov_b32 s33, %d" % spin)
    a("s_waitcnt lgkmcnt(0)")
    a("s_barrier                            ; BV")
    a("s_barrier                            ; BC")
    S(13)
    a("s_cmp_ge_u32 s34, 56")
    a("s_cbranch_scc1 L_fin")
    a.raw("L_opoll:")
    a("global_load_dwordx4 v[24:27], v14, s[18:19] sc1")
    a("global_load_dwordx4 v[28:31], v14, s[18:19] offset:16 sc1")
    a("s_sub_u32 s33, s33, 1")
    a("s_cbranch_scc1 L_ogot")
    a("s_waitcnt vmcnt(0)")
    for r in range(24, 32):
        a("v_cmpx_eq_u32_sdwa vcc, v%d, v9 src0_sel:BYTE_0 src1_sel:DWORD" % r)
    a("s_cmp_eq_u64 exec, -1")
    a("s_mov_b64 exec, -1")
    a("s_cbranch_scc0 L_opoll")
    a.raw("L_ogot:")
    S(14)
    a("s_nop 1")
    a("v_permlane32_swap_b32 v24, v26")
    a("v_permlane32_swap_b32 v25, v27")
    a("v_permlane32_swap_b32 v28, v30")
    a("v_permlane32_swap_b32 v29, v31")
    a("v_add_f32 v24, v24, v26")
    a("v_add_f32 v25, v25, v27")
    a("v_add_f32 v28, v28, v30")
    a("v_add_f32 v29, v29, v31")
    a("s_nop 0")
    a("v_permlane16_swap_b32 v24, v25")
    a("v_permlane16_swap_b32 v28, v29")
    a("v_add_f32 v24, v24, v25")
    a("v_add_f32 v28, v28, v29")
    for k in (8, 4, 2, 1):
        a("s_nop 0")
        a("v_add_f32_dpp v24, v24, v24 row_ror:%d row_mask:0xf bank_mask:0xf" % k)
        a("v_add_f32_dpp v28, v28, v28 row_ror:%d row_mask:0xf bank_mask:0xf" % k)
    a("s_mov_b32 exec_lo, 0x00010001")
    a("s_mov_b32 exec_hi, 0x00010001")
    a("v_cvt_pk_bf16_f32 v24, v24, v28")
    a("global_store_dword v13, v24, s[14:15]")
    a("s_cmp_lg_u32 s2, 0")
    a("s_cbranch_scc1 L_fin")
    a("s_mov_b64 exec, 1")
    a("v_mov_b32 v13, %d" % WS_EPOCH)
    a("global_store_dword v13, v22, s[18:19]")
    a("s_branch L_fin")
    a.raw("L_load:")
    a("s_sub_u32 s26, s21, 1")
    a("v_lshrrev_b32 v1, 3, v0              ; r8")
    a("v_mul_u32_u24 v2, 896, v1")
    a("v_and_b32 v1, 6, v1")
    a("v_xor_b32 v1, v1, v0")
    a("v_and_b32 v1, 7, v1")
    a("v_lshl_add_u32 v2, v1, 4, v2")
    a("v_lshrrev_b32 v1, 2, v0")
    a("v_lshlrev_b32 v3, 9, v1")
    a("v_lshrrev_b32 v1, 3, v0")
    a("v_and_b32 v1, 2, v1")
    a("v_xor_b32 v1, v1, v0")
    a("v_and_b32 v1, 3, v1")
    a("v_lshl_add_u32 v3, v1, 4, v3")
    a("s_lshl_b32 s27, s20, 1")
    a("s_add_u32 s27, s27, s26")
    a("s_lshl_b32 s27, s27, 3")
    a("s_add_u32 s27, s27, s24")
    a("s_mul_i32 s27, s27, %d               ; first wo row * 896" % (32 * 896))
    a("s_lshl_b32 s28, s25, 21")
    a("s_lshl_b32 s29, s24, 6")
    a("s_add_u32 s28, s28, s29")
    a("s_add_u32 s28, s28, %d" % (3072 * 512))
    a("s_mul_i32 s29, s26, 28672")
    a("s_add_u32 s29, s29, %d" % L_WO)
    a("s_waitcnt lgkmcnt(0)")
    a("s_add_u32 s36, s12, s27")
    a("s_addc_u32 s37, s13, 0")
    a("s_mov_b32 s38, 28672")
    a("s_mov_b32 s39, 0x20000")
    a("s_add_u32 s40, s8, s28")
    a("s_addc_u32 s41, s9, 0")
    a("s_mov_b32 s42, %d" % (1024 * 512 - 448))
    a("s_mov_b32 s43, 0x20000")
    if vkey == "none":
        a("s_mov_b32 s44, s26")
    elif vkey == "kb":
        a("s_lshl_b32 s44, s25, 1")
        a("s_or_b32 s44, s44, s26")
    elif vkey == "jb":
        a("s_lshr_b32 s44, s22, 1")
        a("s_lshl_b32 s44, s44, 1")
        a("s_or_b32 s44, s44, s26")
    a("s_barrier                            ; B0")
    a("s_mov_b32 m0, s29")
    a("s_mov_b32 s30, 0")
    a("s_barrier                            ; BX")
    a.raw("L_wo:")
    for rb in range(4):
        a("s_add_u32 s31, s30, %d" % (7168 * rb))
        a("s_waitcnt vmcnt(%d)" % (N - 1))
        a("buffer_load_dwordx4 v2, s[36:39], s31 offen%s lds" % pol(nto))
        a("s_add_u32 m0, m0, 1024")
    a("s_add_u32 s30, s30, 128")
    a("s_cmp_lt_u32 s30, 896")
    a("s_cbranch_scc1 L_wo")
    a("s_mov_b32 s30, 0")
    a.raw("L_v:")
    a("s_xor_b32 s31, s30, s44")
    a("s_lshl_b32 m0, s31, 10")
    a("s_lshl_b32 s31, s31, 13")
    a("s_add_u32 s30, s30, 2")
    a("s_cmp_lt_u32 s30, 64")
    a("s_waitcnt vmcnt(%d)" % (N - 1))
    a("buffer_load_dwordx4 v3, s[40:43], s31 offen%s lds" % pol(ntv))
    a("s_cbranch_scc1 L_v")
    a("s_waitcnt vmcnt(0)")
    S(12)
    a("s_barrier                            ; BV")
    if diag is not None:
        a("s_barrier")
    a("s_branch L_fin")
    a.raw("L_work:")
    a("s_sub_u32 s26, s21, 3                ; w")
    a("v_and_b32 v3, 3, v0                  ; lane&3")
    a("v_bfe_u32 v4, v0, 2, 2               ; (lane>>2)&3")
    a("v_lshrrev_b32 v5, 4, v0              ; g")
    a("v_lshlrev_b32 v1, 4, v3")
    a("v_lshl_add_u32 v1, v4, 11, v1")
    a("v_lshl_add_u32 v1, v5, 6, v1")
    a("v_add_u32 v2, 8192, v1")
    a("s_lshl_b32 s27, s24, 2")
    a("s_add_u32 s27, s27, s26")
    a("s_lshl_b32 s28, s25, 21")
    a("s_lshl_b32 s29, s27, 14")
    a("s_add_u32 s28, s28, s29")
    a("s_add_u32 s28, s28, %d" % (3072 * 512))
    a("s_waitcnt lgkmcnt(0)")
    a("s_add_u32 s30, s6, s28")
    a("s_addc_u32 s31, s7, 0")
    a("s_barrier                            ; B0")
    for be in range(2):
        for r in range(4):
            for t in range(2):
                d = 64 + 4 * (8 * be + 2 * r + t)
                a("global_load_dwordx4 v[%d:%d], v%d, s[30:31] offset:%d%s" % (d, d + 3, 1 + be, 512 * r + 256 * t, pol(ntk)))
    a("v_and_b32 v6, 1, v0                  ; h")
    a("v_lshlrev_b32 v7, 9, v6")
    a("v_lshl_add_u32 v7, v5, 6, v7")
    a("v_lshl_add_u32 v7, v4, 4, v7")
    a("v_add_u32 v7, %d, v7" % L_Q)
    a("v_mov_b32 v8, %d" % L_FLAG)
    a("v_lshl_add_u32 v9, v5, 1, v6")
    a("v_lshlrev_b32 v9, 5, v9")
    a("s_lshl_b32 s28, s25, 13")
    a("s_add_u32 s28, s28, %d" % WS_S)
    a("s_lshl_b32 s29, s27, 8")
    a("s_add_u32 s29, s29, s28")
    a("v_lshl_add_u32 v10, v4, 4, v9")
    a("v_add_u32 v10, s29, v10")
    a("s_lshl_b32 s29, s26, 11")
    a("s_add_u32 s29, s29, s28")
    a("v_bfe_u32 v11, v0, 1, 3")
    a("v_lshl_add_u32 v11, v11, 8, v9")
    a("v_add_u32 v11, s29, v11")
    a("v_lshrrev_b32 v12, 2, v0")
    a("v_lshlrev_b32 v12, 6, v12")
    a("v_lshl_add_u32 v12, v3, 3, v12")
    a("v_and_b32 v13, 1, v5")
    a("v_lshl_add_u32 v12, v13, 5, v12")
    a("s_lshl_b32 s29, s26, 14")
    a("v_add_u32 v12, s29, v12")
    a("v_xor_b32 v13, 32, v12")
    a("v_lshrrev_b32 v14, 2, v0")
    a("v_lshlrev_b32 v14, 7, v14")
    a("v_lshl_add_u32 v14, v3, 3, v14")
    a("v_bfe_u32 v15, v0, 3, 2")
    a("v_lshl_add_u32 v14, v15, 5, v14")
    a("s_lshl_b32 s29, s26, 13")
    a("s_add_u32 s29, s29, %d" % L_WO)
    a("v_add_u32 v224, s29, v14")
    a("v_xor_b32 v225, 32, v224")
    a("v_xor_b32 v226, 64, v224")
    a("v_xor_b32 v227, 96, v224")
    a("s_lshl_b32 s29, s26, 3")
    a("s_add_u32 s29, s29, %d" % L_ST)
    a("v_lshlrev_b32 v228, 5, v6")
    a("v_add_u32 v228, s29, v228")
    a("v_bfe_u32 v229, v0, 3, 1")
    a("v_lshl_add_u32 v229, v229, 2, v3")
    a("v_lshlrev_b32 v229, 3, v229")
    a("v_add_u32 v229, %d, v229" % L_ST)
    a("s_lshl_b32 s29, s26, 4")
    a("s_add_u32 s29, s29, %d" % L_O)
    a("v_lshlrev_b32 v230, 8, v5")
    a("v_lshl_add_u32 v230, v6, 7, v230")
    a("v_add_u32 v230, s29, v230")
    a("v_lshlrev_b32 v232, 4, v0")
    a("v_add_u32 v231, %d, v232" % L_O)
    a("s_lshl_b32 s28, s25, 3")
    a("s_add_u32 s28, s28, s24")
    a("s_mul_i32 s28, s28, 1792")
    a("s_lshl_b32 s29, s26, 9")
    a("s_add_u32 s28, s28, s29")
    a("s_add_u32 s28, s28, %d" % WS_O)
    a("v_add_u32 v232, s28, v232")
    for i in range(4):
        a("v_mov_b32 v%d, 0x3f803f80" % (236 + i))
    a("s_mov_b32 s33, %d" % spin)
    a("s_mov_b32 s35, 0x%x" % C_SCALE)
    a("s_waitcnt vmcnt(%d)" % XK)
    a("s_barrier                            ; BX")
    a("s_waitcnt vmcnt(0)")
    S(5)
    a.raw("L_qspin:")
    a("ds_read_b32 v24, v8")
    a("ds_read_b128 v[16:19], v7")
    a("ds_read_b128 v[20:23], v7 offset:256")
    a("s_sub_u32 s33, s33, 1")
    a("s_cbranch_scc1 L_qseen")
    a("s_waitcnt lgkmcnt(0)")
    a("v_readfirstlane_b32 s32, v24")
    a("s_cmp_eq_u32 s32, 0")
    a("s_cbranch_scc1 L_qspin")
    a.raw("L_qseen:")
    S(6)
    for T in range(8):
        d = 32 + 4 * T; k = 64 + 8 * T
        a("v_mfma_f32_16x16x32_bf16 v[%d:%d], v[%d:%d], v[16:19], 0" % (d, d + 3, k, k + 3))
        a("v_mfma_f32_16x16x32_bf16 v[%d:%d], v[%d:%d], v[20:23], v[%d:%d]" % (d, d + 3, k + 4, k + 7, d, d + 3))
    a("s_lshl_b32 s34, s32, 16")
    for be in range(2):
        for step in range(3):
            for r in range(4):
                d = 32 + 4 * (4 * be + r)
                src1 = d + be if step == 0 else 24 + r
                a("v_add_f32_dpp v%d, v%d, v%d row_ror:%d row_mask:0xf bank_mask:0x%x" % (24 + r, d + ((be + step + 1) & 3), src1, 12 - 4 * step, 1 << be))
    a("s_mov_b32 exec_lo, 0x00330033")
    a("s_mov_b32 exec_hi, 0x00330033")
    for r in range(4):
        a("v_cvt_pk_bf16_f32 v%d, s34, v%d" % (28 + r, 24 + r))
    a("global_store_dwordx4 v10, v[28:31], s[18:19] sc1")
    a("s_mov_b64 exec, -1")
    S(7)
    a("s_mov_b32 s33, %d" % spin)
    a.raw("L_spoll:")
    a("global_load_dwordx4 v[32:35], v11, s[18:19] sc1")
    a("global_load_dwordx4 v[36:39], v11, s[18:19] offset:16 sc1")
    a("s_sub_u32 s33, s33, 1")
    a("s_cbranch_scc1 L_sgot")
    a("s_waitcnt vmcnt(0)")
    for r in range(32, 40):
        a("v_cmpx_eq_u16 vcc, s32, v%d" % r)
    a("s_cmp_eq_u64 exec, -1")
    a("s_mov_b64 exec, -1")
    a("s_cbranch_scc0 L_spoll")
    a.raw("L_sgot:")
    S(8)
    for r in range(32, 40):
        a("v_and_b32 v%d, 0xffff0000, v%d" % (r, r))
    a("v_max3_f32 v24, v32, v33, v34")
    a("v_max3_f32 v25, v35, v36, v37")
    a("v_max3_f32 v24, v38, v39, v24")
    a("v_max_f32 v24, v24, v25")
    for k in (2, 4, 8):
        a("s_nop 1")
        a("v_max_f32_dpp v24, v24, v24 row_ror:%d row_mask:0xf bank_mask:0xf" % k)
    a("v_mov_b32 v25, v24")
    a("s_nop 1")
    a("v_permlane16_swap_b32 v24, v25")
    a("v_max_f32 v24, v24, v25")
    a("v_mov_b32 v25, v24")
    a("s_nop 1")
    a("v_permlane32_swap_b32 v24, v25")
    a("v_max_f32 v24, v24, v25")
    a("v_mul_f32 v24, s35, v24")
    for r in range(32, 40):
        a("v_fma_f32 v%d, v%d, s35, -v24" % (r, r))
    for r in range(32, 40):
        a("v_exp_f32 v%d, v%d" % (r, r))
    for i in range(4):
        a("v_cvt_pk_bf16_f32 v%d, v%d, v%d" % (64 + i, 32 + 2 * i, 33 + 2 * i))
    a("s_nop 1")
    a("v_mfma_f32_16x16x32_bf16 v[48:51], v[236:239], v[64:67], 0")
    for u in range(1, 8):
        for i in range(4):
            a("v_mov_b32_dpp v%d, v%d row_shl:%d row_mask:0xf bank_mask:0xf" % (64 + 4 * u + i, 64 + i, 2 * u))
    a("v_add_f32_dpp v25, v48, v48 row_ror:2 row_mask:0xf bank_mask:0xf")
    for k in (4, 8):
        a("s_nop 1")
        a("v_add_f32_dpp v25, v25, v25 row_ror:%d row_mask:0xf bank_mask:0xf" % k)
    a("s_mov_b64 exec, 3")
    a("ds_write_b64 v228, v[24:25]")
    a("s_mov_b64 exec, -1")
    a("s_waitcnt lgkmcnt(0)")
    a("s_barrier                            ; BV")
    S(9)
    reads = ["ds_read_b64 v[26:27], v229"]
    for u in range(8):
        for ct in range(2):
            d = 96 + 8 * u + 4 * ct
            reads.append("ds_read_b64_tr_b16 v[%d:%d], v%d offset:%d" % (d, d + 1, 12 + ct, 2048 * u))
            reads.append("ds_read_b64_tr_b16 v[%d:%d], v%d offset:%d" % (d + 2, d + 3, 12 + ct, 2048 * u + 1024))
    for c in range(2):
        for tt in range(4):
            for h in range(2):
                d = 160 + 4 * (8 * c + 2 * tt + h)
                reads.append("ds_read_b64_tr_b16 v[%d:%d], v%d offset:%d" % (d, d + 1, 224 + tt, 28672 * h + 4096 * c))
                reads.append("ds_read_b64_tr_b16 v[%d:%d], v%d offset:%d" % (d + 2, d + 3, 224 + tt, 28672 * h + 4096 * c + 2048))
    scale_ops = [
        "v_max_f32_dpp v28, v26, v26 quad_perm:[1,0,3,2] row_mask:0xf bank_mask:0xf",
        "v_max_f32_dpp v28, v28, v28 quad_perm:[2,3,0,1] row_mask:0xf bank_mask:0xf",
        "v_sub_f32 v28, v26, v28",
        "v_exp_f32 v28, v28",
        "v_mul_f32 v29, v28, v27",
        "v_add_f32_dpp v29, v29, v29 quad_perm:[1,0,3,2] row_mask:0xf bank_mask:0xf",
        "v_add_f32_dpp v29, v29, v29 quad_perm:[2,3,0,1] row_mask:0xf bank_mask:0xf",
        "v_rcp_f32 v29, v29",
        "v_mul_f32 v28, v28, v29",
    ]
    issued = 0
    WIN = 13
    while issued < WIN:
        a(reads[issued]); issued += 1
    for u in range(8):
        for ct in range(2):
            need = 1 + 4 * u + 2 * ct + 2
            a("s_waitcnt lgkmcnt(%d)" % (issued - need))
            d = 96 + 8 * u + 4 * ct
            acc = 52 + 4 * ct
            a("v_mfma_f32_16x16x32_bf16 v[%d:%d], v[%d:%d], v[%d:%d], %s" % (acc, acc + 3, d, d + 3, 64 + 4 * u, 67 + 4 * u, "0" if u == 0 else "v[%d:%d]" % (acc, acc + 3)))
            for _ in range(2):
                a(reads[issued]); issued += 1
            if scale_ops:
                a(scale_ops.pop(0))
    assert not scale_ops
    for _ in range(8):
        a(reads[issued]); issued += 1
    a("s_mov_b32 exec_lo, 0x00030003")
    a("s_mov_b32 exec_hi, 0x00030003")
    a("ds_write_b128 v230, v[52:55]")
    a("ds_write_b128 v230, v[56:59] offset:64")
    a("s_mov_b64 exec, -1")
    a("s_waitcnt lgkmcnt(0)")
    a("s_barrier                            ; BC")
    a("ds_read_b128 v[32:35], v231")
    rest = len(reads) - issued
    while issued < len(reads):
        a(reads[issued]); issued += 1
    a("s_waitcnt lgkmcnt(%d)" % rest)
    S(10)
    for i in range(4):
        a("v_mul_f32 v%d, v%d, v28" % (32 + i, 32 + i))
    for qp in ("[1,0,3,2]", "[2,3,0,1]"):
        for i in range(4):
            a("v_add_f32_dpp v%d, v%d, v%d quad_perm:%s row_mask:0xf bank_mask:0xf" % (32 + i, 32 + i, 32 + i, qp))
    a("v_cvt_pk_bf16_f32 v36, v32, v33")
    a("v_cvt_pk_bf16_f32 v37, v34, v35")
    a("s_mov_b32 s36, 0xff")
    a("v_mov_b32 v24, s32")
    for k in range(1, 4):
        a("v_mov_b32_dpp v%d, v36 row_ror:%d row_mask:0xf bank_mask:0xf" % (36 + 2 * k, 16 - 4 * k))
        a("v_mov_b32_dpp v%d, v37 row_ror:%d row_mask:0xf bank_mask:0xf" % (37 + 2 * k, 16 - 4 * k))
    a("s_waitcnt lgkmcnt(0)")
    a("s_nop 0")
    for c in range(2):
        for tt in range(4):
            acc = 64 + 4 * (4 * c + tt)
            d = 160 + 4 * (8 * c + 2 * tt)
            a("v_mfma_f32_16x16x32_bf16 v[%d:%d], v[36:39], v[%d:%d], 0" % (acc, acc + 3, d, d + 3))
            a("v_mfma_f32_16x16x32_bf16 v[%d:%d], v[40:43], v[%d:%d], v[%d:%d]" % (acc, acc + 3, d + 4, d + 7, acc, acc + 3))
    a("s_mov_b64 exec, 0xffff")
    for tt in range(4):
        a("v_bfi_b32 v%d, s36, v24, v%d" % (48 + tt, 64 + 4 * tt))
    a("global_store_dwordx4 v232, v[48:51], s[18:19] sc1")
    a("s_cmp_eq_u32 s26, 3")
    a("s_cbranch_scc1 L_wfin")
    for tt in range(4):
        a("v_bfi_b32 v%d, s36, v24, v%d" % (52 + tt, 80 + 4 * tt))
    a("global_store_dwordx4 v232, v[52:55], s[18:19] offset:256 sc1")
    a.raw("L_wfin:")
    S(11)
    a.raw("L_fin:")
    if st and diag is not None:
        if only is not None:
            a("s_cmp_lg_u32 s2, %d" % only)
            a("s_cbranch_scc1 L_end")
        diag_tail(a, diag)
    elif st:
        S(15)
        stamps_flush(a, 16, 18, 2, 21, 3, 4)
    a.raw("L_end:")
    a("s_endpgm")
    kernel_desc(a, vgpr=vg, accum=240, sgpr=102 if st else 48)
    return file_head(256, 448, ldsb, STN if st else None) + a.text()

if __name__ == "__main__":
    import json
    out = sys.argv[1]
    kw = json.loads(sys.argv[2]) if len(sys.argv) > 2 else {}
    open(out, "w").write(gen(**kw))
```
